```python
import torch

def _softmax(x, axis=-1):
    return torch.softmax(x, dim=axis)
def _gelu(x):
    return torch.nn.functional.gelu(x, approximate="tanh")
def _silu(x):
    return torch.nn.functional.silu(x)
def _sigmoid(x):
    return torch.sigmoid(x)
def _layernorm(x, axis=-1, eps=1e-5):
    m = x.mean(dim=axis, keepdim=True)
    v = x.var(dim=axis, keepdim=True, unbiased=False)
    return (x - m) / torch.sqrt(v + eps)
def _scatter_add(tgt, idx, src, axis=0):
    return tgt.clone().index_add_(axis, idx, src)
def _segment_sum(src, seg, n):
    out = torch.zeros((n,) + src.shape[1:], dtype=src.dtype)
    return out.index_add_(0, seg, src)
def _pad(x, pw):
    flat = tuple(v for pair in reversed(pw) for v in pair)
    return torch.nn.functional.pad(x, flat)

kernel_name = 'gated_mix__gqa_block_cached__gqa_block_cached__decode'

def setup_inputs():

    _w = (lambda a: (lambda t: t.to(torch.bfloat16) if t.is_floating_point() else t)(torch.as_tensor(a)))
    def _A_setup():
        B, Sq, D = 4, 1, 1024
        Hq, Hkv, Sk, Dh = 32, 4, 8192, 128
        assert Hq % Hkv == 0, (Hq, Hkv)
        return {
            "x": _w((lambda *s: torch.randn(*s, dtype=torch.bfloat16) * 0.05)(B, Sq, D)),
            "k_cache": _w((lambda *s: torch.randn(*s, dtype=torch.bfloat16) * 6.4)(B, Hkv, Sk, Dh)),
            "v_cache": _w((lambda *s: torch.randn(*s, dtype=torch.bfloat16) * 0.05)(B, Hkv, Sk, Dh)),
            "wq": _w((lambda *s: torch.randn(*s, dtype=torch.bfloat16) * 6.4)(D, Hq * Dh) * (D ** -0.5)),
            "wo": _w((lambda *s: torch.randn(*s, dtype=torch.bfloat16) * 0.05)(Hq * Dh, D) * ((Hq * Dh) ** -0.5)),
        }
    _A_in = _A_setup()

    def _B_setup():
        B, Sq, D = 4, 1, 1024
        Hq, Hkv, Sk, Dh = 32, 4, 8192, 128
        assert Hq % Hkv == 0, (Hq, Hkv)
        return {
            "x": _w((lambda *s: torch.randn(*s, dtype=torch.bfloat16) * 0.05)(B, Sq, D)),
            "k_cache": _w((lambda *s: torch.randn(*s, dtype=torch.bfloat16) * 6.4)(B, Hkv, Sk, Dh)),
            "v_cache": _w((lambda *s: torch.randn(*s, dtype=torch.bfloat16) * 0.05)(B, Hkv, Sk, Dh)),
            "wq": _w((lambda *s: torch.randn(*s, dtype=torch.bfloat16) * 6.4)(D, Hq * Dh) * (D ** -0.5)),
            "wo": _w((lambda *s: torch.randn(*s, dtype=torch.bfloat16) * 0.05)(Hq * Dh, D) * ((Hq * Dh) ** -0.5)),
        }
    _B_in = _B_setup()

    return {
        "A_x": _A_in["x"],
        "A_k_cache": _A_in["k_cache"],
        "A_v_cache": _A_in["v_cache"],
        "A_wq": _A_in["wq"],
        "A_wo": _A_in["wo"],
        "B_x": _B_in["x"],
        "B_k_cache": _B_in["k_cache"],
        "B_v_cache": _B_in["v_cache"],
        "B_wq": _B_in["wq"],
        "B_wo": _B_in["wo"],
        "gate_w": _w((lambda *s: torch.randn(*s, dtype=torch.bfloat16) * 0.05)(1024) * 16.0),
    }

def reference(A_x, A_k_cache, A_v_cache, A_wq, A_wo, B_x, B_k_cache, B_v_cache, B_wq, B_wo, gate_w):
    def _A_ref(x, k_cache, v_cache, wq, wo):
        B, Sq, D = x.shape
        Hq, Dh = 32, 128
        Hkv = k_cache.shape[1]
        rep = Hq // Hkv
        q = (lambda x, *d: x.permute(*d))((x @ wq).reshape(B, Sq, Hq, Dh), 0, 2, 1, 3)
        k = (lambda x, n, axis: torch.repeat_interleave(x, n, dim=axis))(k_cache, rep, axis=1)
        v = (lambda x, n, axis: torch.repeat_interleave(x, n, dim=axis))(v_cache, rep, axis=1)
        scores = torch.einsum("bhqd,bhkd->bhqk", q, k) * (Dh ** -0.5)
        p = _softmax(scores, axis=-1)
        o = torch.einsum("bhqk,bhkd->bhqd", p, v)
        return (lambda x, *d: x.permute(*d))(o, 0, 2, 1, 3).reshape(B, Sq, Hq * Dh) @ wo

    def _B_ref(x, k_cache, v_cache, wq, wo):
        B, Sq, D = x.shape
        Hq, Dh = 32, 128
        Hkv = k_cache.shape[1]
        rep = Hq // Hkv
        q = (lambda x, *d: x.permute(*d))((x @ wq).reshape(B, Sq, Hq, Dh), 0, 2, 1, 3)
        k = (lambda x, n, axis: torch.repeat_interleave(x, n, dim=axis))(k_cache, rep, axis=1)
        v = (lambda x, n, axis: torch.repeat_interleave(x, n, dim=axis))(v_cache, rep, axis=1)
        scores = torch.einsum("bhqd,bhkd->bhqk", q, k) * (Dh ** -0.5)
        p = _softmax(scores, axis=-1)
        o = torch.einsum("bhqk,bhkd->bhqd", p, v)
        return (lambda x, *d: x.permute(*d))(o, 0, 2, 1, 3).reshape(B, Sq, Hq * Dh) @ wo

    x = A_x
    g = _sigmoid((x * gate_w).sum(-1, keepdims=True))
    a = _A_ref(x, A_k_cache, A_v_cache, A_wq, A_wo)
    b = _B_ref(x, B_k_cache, B_v_cache, B_wq, B_wo)
    return g * a + (1 - g) * b
```

```python
KNAME = "gated_mix__gqa_block_cached__gqa_block_cached__decode_kernel"

HEADER = """; Kernarg layout for this problem (112 bytes, ptrs only, base s[0:1]):
"""

class Asm:
    def __init__(self):
        self.lines = []
        self.vm = []
        self.lab = 0
    def e(self, s):
        self.lines.append("    " + s)
    def c(self, s):
        self.lines.append("    ; " + s)
    def label(self, name):
        self.lines.append(name + ":")
    def newlabel(self, p="L"):
        self.lab += 1
        return "%s_%d" % (p, self.lab)
    def vmem(self, s, tag):
        self.e(s)
        self.vm.append(tag)
    def wait_vm(self, tag, extra=""):
        idx = max(i for i, t in enumerate(self.vm) if t == tag)
        n = len(self.vm) - 1 - idx
        assert n <= 63
        self.e("s_waitcnt vmcnt(%d)%s" % (n, extra))
        self.vm = self.vm[idx + 1:]
    def wait_vm_all(self):
        self.e("s_waitcnt vmcnt(0)")
        self.vm = []
    def text(self):
        return "\n".join(self.lines) + "\n"

def wrap(body, grid, block, lds, vgpr, sgpr=102, accum=None, name=KNAME):
    if accum is None:
        accum = (vgpr + 3) // 4 * 4
        accum = min(accum, 256)
    s = HEADER
    s += "; @launch grid=(%d,1,1) block=(%d,1,1) lds=%d\n" % (grid, block, lds)
    s += '.amdgcn_target "amdgcn-amd-amdhsa--gfx950"\n.text\n.globl %s\n.p2align 8\n.type %s,@function\n%s:\n' % (name, name, name)
    s += body
    s += "s_endpgm\n.section .rodata,\"a\"\n.p2align 6\n.amdhsa_kernel %s\n" % name
    s += "  .amdhsa_next_free_vgpr %d\n  .amdhsa_next_free_sgpr %d\n  .amdhsa_accum_offset %d\n" % (vgpr, sgpr, accum)
    s += "  .amdhsa_group_segment_fixed_size 0\n  .amdhsa_kernarg_size 112\n  .amdhsa_user_sgpr_count 2\n"
    s += "  .amdhsa_user_sgpr_kernarg_segment_ptr 1\n  .amdhsa_system_sgpr_workgroup_id_x 1\n.end_amdhsa_kernel\n"
    return s
```

```python
import sys, struct
from asmlib import *

def f2u(f):
    return struct.unpack("<I", struct.pack("<f", f))[0]

WS_CNT = 0
WS_QP = 0x10000
WS_OP = 0x100000
WS_ML = 0x200000
WS_OUTP = 0x300000
WS_STAMP = 0x4000000
L_QL = 0
L_QB = L_QL + 8192
L_OB = L_QB + 2048
L_MLB = L_OB + 16384
L_OL = L_MLB + 256
L_RING = 32768
L_END = L_RING + 65536
assert L_OL + 1024 <= L_RING

SPIN_CAP = 200000

def gen(NS=4, nt=True, stamps=False, flag_at=4, gather_at=8):
    a = Asm()
    e = a.e
    ntf = " nt" if nt else ""
    NCH = 2 * NS
    stat_keys = NS * 32 + 32
    pool_base = 32 * stat_keys * 256
    pool_units = (8192 - 32 * stat_keys) // 16
    CEXP = 1.4426950408889634 / (128.0 ** 0.5)

    vTID, vLANE = 0, 1
    vKoff = [2, 3, 4, 5]
    vVoff = [6, 7]
    vWQoff = [8, 9]
    vWOoff = [10, 11, 12, 13]
    vKrd = [14, 15, 16, 17]
    vVrd = list(range(18, 26))
    vT = list(range(26, 32))
    vQ = 32
    vO = 48
    vS = 80
    vP = 120
    vKF = 140
    vVF = 156
    vM, vL, vMC, vAL = 172, 173, 174, 175
    vX = 176
    vG = 184
    vGT = 200
    vGATE = 216
    vA0, vA1, vA2, vA3 = 217, 218, 219, 220
    vFL = 221
    vMARK = 224
    def parked(kind, i):
        idx = (i if kind == "k" else NCH + i) * 16
        assert idx + 16 <= 256, "NS too large for AGPR-only parking"
        return idx
    sWAVE, sX, sJ, sPAIR, sSPLIT = 32, 33, 34, 35, 36
    sBR, sBH, sHH1 = 37, 38, 39
    K_SRD, V_SRD, WQ_SRD, WO_SRD = 40, 44, 48, 52
    sKV, sT0, sLDS, sWQ, sWO = 56, 57, 58, 59, 60
    sT1, sOFF, sPOOL, sCLAIM, sUNIT = 61, 62, 63, 64, 65
    sST, sSPIN, sC = 66, 67, 68
    sCNT = 70
    sEX = 72
    sG3, sHH3, sCB = 74, 75, 76
    sT2, sT3 = 77, 78
    WS = "s[30:31]"; DBG = "s[28:29]"
    stamp_regs = []
    def stamp():
        if stamps:
            r = 80 + 2 * len(stamp_regs)
            assert r + 1 <= 101
            stamp_regs.append(r)
            e("s_memrealtime s[%d:%d]" % (r, r + 1))
    def nop(n):
        while n > 0:
            k = min(n, 16)
            e("s_nop %d" % (k - 1)); n -= k
    def vr(b, n): return "v[%d:%d]" % (b, b + n - 1)
    def ar(b, n): return "a[%d:%d]" % (b, b + n - 1)

    e("s_cmp_ge_u32 s2, 256")
    e("s_cbranch_scc1 L_end")
    stamp()
    e("s_load_dwordx16 s[4:19], s[0:1], 0")
    e("s_load_dwordx8 s[20:27], s[0:1], 64")
    e("s_load_dwordx4 s[28:31], s[0:1], 96")
    e("v_lshrrev_b32 v%d, 6, v0" % vT[0])
    e("v_and_b32 v%d, 63, v0" % vLANE)
    e("v_readfirstlane_b32 s%d, v%d" % (sWAVE, vT[0]))
    e("s_and_b32 s%d, s2, 7" % sX)
    e("s_lshr_b32 s%d, s2, 3" % sJ)
    e("s_mov_b32 s%d, s%d" % (sPAIR, sJ))
    e("s_mov_b32 s%d, s%d" % (sSPLIT, sX))
    e("s_lshr_b32 s%d, s%d, 4" % (sBR, sPAIR))
    e("s_and_b32 s%d, s%d, 15" % (sBH, sPAIR))
    e("s_add_u32 s%d, s%d, s%d" % (sHH1, sJ, sX))
    e("s_and_b32 s%d, s%d, 7" % (sHH1, sHH1))
    e("s_mov_b32 s%d, s%d" % (sG3, sX))
    e("s_lshr_b32 s%d, s%d, 2" % (sHH3, sJ))
    e("s_and_b32 s%d, s%d, 3" % (sCB, sHH1))
    e("s_lshl_b32 s%d, s%d, 14" % (sLDS, sWAVE))
    e("s_add_u32 s%d, s%d, %d" % (sLDS, sLDS, L_RING))
    e("s_mov_b32 s%d, 0x%08x" % (sC, f2u(CEXP)))
    l16, lhi = vT[0], vT[1]
    e("v_and_b32 v%d, 15, v%d" % (l16, vLANE))
    e("v_lshrrev_b32 v%d, 4, v%d" % (lhi, vLANE))
    for t in range(2):
        e("v_add_u32 v%d, %d, v%d" % (vT[2], 4 * t, lhi))
        e("v_lshlrev_b32 v%d, 1, v%d" % (vT[2], vT[2]))
        e("v_xor_b32 v%d, v%d, v%d" % (vT[2], vT[2], l16))
        e("v_lshlrev_b32 v%d, 4, v%d" % (vT[2], vT[2]))
        e("v_lshl_add_u32 v%d, v%d, 13, v%d" % (vWQoff[t], lhi, vT[2]))
        e("v_lshl_add_u32 v%d, v%d, 8, v%d" % (vVoff[t], lhi, vT[2]))
    for t in range(4):
        e("v_add_u32 v%d, %d, v%d" % (vT[2], 4 * t, lhi))
        e("v_xor_b32 v%d, v%d, v%d" % (vT[2], vT[2], l16))
        e("v_lshlrev_b32 v%d, 4, v%d" % (vT[2], vT[2]))
        e("v_lshl_add_u32 v%d, v%d, 8, v%d" % (vKoff[t], lhi, vT[2]))
    e("v_and_b32 v%d, 3, v%d" % (vT[2], vLANE))
    e("v_lshlrev_b32 v%d, 11, v%d" % (vT[2], vT[2]))
    e("v_lshl_add_u32 v%d, v%d, 3, v%d" % (vA0, lhi, vT[2]))
    e("s_lshr_b32 s%d, s%d, 3" % (sT0, sJ))
    e("s_lshl_b32 s%d, s%d, 9" % (sT1, sT0))
    e("s_lshl_b32 s%d, s%d, 7" % (sT2, sWAVE))
    e("s_add_u32 s%d, s%d, s%d" % (sT1, sT1, sT2))
    e("v_add_u32 v%d, s%d, v%d" % (vA0, sT1, vA0))
    e("s_lshl_b32 s%d, s%d, 12" % (sWQ, sT1))
    e("s_and_b32 s%d, s%d, 3" % (sT2, sX)); e("s_lshl_b32 s%d, s%d, 11" % (sT2, sT2)); e("s_add_u32 s%d, s%d, s%d" % (sWQ, sWQ, sT2))
    e("s_lshl_b32 s%d, s%d, 8" % (sT2, sHH1)); e("s_add_u32 s%d, s%d, s%d" % (sWQ, sWQ, sT2))
    e("s_lshl_b32 s%d, s%d, 21" % (sPOOL, sBH))
    e("s_lshl_b32 s%d, s%d, 2" % (sT2, sSPLIT)); e("s_add_u32 s%d, s%d, s%d" % (sT2, sT2, sWAVE))
    e("s_mul_i32 s%d, s%d, %d" % (sKV, sT2, stat_keys * 256)); e("s_add_u32 s%d, s%d, s%d" % (sKV, sKV, sPOOL))
    e("s_add_u32 s%d, s%d, %d" % (sPOOL, sPOOL, pool_base))
    e("s_waitcnt lgkmcnt(0)")
    e("s_cmp_lt_u32 s%d, 4" % sX)
    e("s_cselect_b32 s48, s10, s20"); e("s_cselect_b32 s49, s11, s21")
    e("s_cselect_b32 s52, s12, s22"); e("s_cselect_b32 s53, s13, s23")
    e("s_mov_b32 s50, 8388608"); e("s_mov_b32 s51, 0x20000")
    e("s_mov_b32 s54, 8388608"); e("s_mov_b32 s55, 0x20000")
    e("s_cmp_eq_u32 s%d, 0" % sBR)
    e("s_cselect_b32 s40, s6, s16"); e("s_cselect_b32 s41, s7, s17")
    e("s_cselect_b32 s44, s8, s18"); e("s_cselect_b32 s45, s9, s19")
    e("s_mov_b32 s42, 33554432"); e("s_mov_b32 s43, 0x20000")
    e("s_mov_b32 s46, 33554432"); e("s_mov_b32 s47, 0x20000")

    e("s_cmp_lg_u32 s%d, 3" % sWAVE)
    e("s_cbranch_scc1 L_noclear")
    for i in range(4): e("v_mov_b32 v%d, -1" % (vMARK + i))
    e("v_lshlrev_b32 v%d, 4, v%d" % (vA1, vLANE))
    e("s_lshl_b32 s%d, s%d, 3" % (sT2, sX)); e("s_add_u32 s%d, s%d, s%d" % (sT2, sT2, sHH1))
    e("s_lshl_b32 s%d, s%d, 2" % (sT2, sT2)); e("s_add_u32 s%d, s%d, s%d" % (sT2, sT2, sT0))
    e("s_lshl_b32 s%d, s%d, 11" % (sT2, sT2)); e("s_add_u32 s%d, s%d, %d" % (sT2, sT2, WS_QP))
    e("v_add_u32 v%d, s%d, v%d" % (vA2, sT2, vA1))
    for i in range(2): e("global_store_dwordx4 v%d, %s, %s offset:%d sc1" % (vA2, vr(vMARK, 4), WS, i * 1024))
    e("s_lshl_b32 s%d, s%d, 3" % (sT2, sPAIR)); e("s_add_u32 s%d, s%d, s%d" % (sT2, sT2, sSPLIT))
    e("s_lshl_b32 s%d, s%d, 12" % (sT2, sT2)); e("s_add_u32 s%d, s%d, %d" % (sT2, sT2, WS_OP))
    e("v_add_u32 v%d, s%d, v%d" % (vA2, sT2, vA1))
    for i in range(4): e("global_store_dwordx4 v%d, %s, %s offset:%d sc1" % (vA2, vr(vMARK, 4), WS, i * 1024))
    e("s_lshl_b32 s%d, s%d, 3" % (sT2, sG3)); e("s_add_u32 s%d, s%d, s%d" % (sT2, sT2, sHH3))
    e("s_lshl_b32 s%d, s%d, 2" % (sT2, sT2)); e("s_add_u32 s%d, s%d, s%d" % (sT2, sT2, sCB))
    e("s_lshl_b32 s%d, s%d, 12" % (sT2, sT2)); e("s_add_u32 s%d, s%d, %d" % (sT2, sT2, WS_OUTP))
    e("v_add_u32 v%d, s%d, v%d" % (vA2, sT2, vA1))
    for i in range(4): e("global_store_dwordx4 v%d, %s, %s offset:%d sc1" % (vA2, vr(vMARK, 4), WS, i * 1024))
    e("s_lshl_b32 s%d, s%d, 9" % (sT2, sPAIR)); e("s_lshl_b32 s%d, s%d, 3" % (sT3, sSPLIT))
    e("s_add_u32 s%d, s%d, s%d" % (sT2, sT2, sT3)); e("s_add_u32 s%d, s%d, %d" % (sT2, sT2, WS_ML))
    e("v_lshlrev_b32 v%d, 6, v%d" % (vA2, vLANE)); e("v_add_u32 v%d, s%d, v%d" % (vA2, sT2, vA2))
    e("s_mov_b64 exec, 0xff")
    e("global_store_dwordx2 v%d, %s, %s sc1" % (vA2, vr(vMARK, 2), WS))
    e("s_mov_b64 exec, 1")
    e("s_lshl_b32 s%d, s%d, 8" % (sT2, sPAIR))
    e("v_mov_b32 v%d, s%d" % (vA2, sT2)); e("v_mov_b32 v%d, 0" % vA3)
    e("s_cmp_lg_u32 s%d, 0" % sSPLIT)
    e("s_cbranch_scc1 L_nocnt")
    e("global_store_dword v%d, v%d, %s sc1" % (vA2, vA3, WS))
    a.label("L_nocnt")
    e("v_mov_b32 v%d, 1" % vA2)
    e("s_waitcnt vmcnt(0)")
    e("global_atomic_add v%d, v%d, %s sc1" % (vA3, vA2, DBG))
    e("s_mov_b64 exec, -1")
    a.label("L_noclear")

    def issue_kv(kind, soff, imm, buf, tag):
        e("s_add_u32 m0, s%d, %d" % (sLDS, buf * 4096))
        e("s_add_u32 s%d, s%d, %d" % (sOFF, soff, imm))
        for t in range(4):
            if kind == "k":
                a.vmem("buffer_load_dwordx4 v%d, s[40:43], s%d offen offset:%d%s lds" % (vKoff[t], sOFF, t * 1024, ntf), tag)
            else:
                a.vmem("buffer_load_dwordx4 v%d, s[44:47], s%d offen offset:%d%s lds" % (vVoff[t & 1], sOFF, t * 1024, ntf), tag)
    def issue_wq(i, buf, tag):
        for t in range(4):
            e("s_add_u32 m0, s%d, %d" % (sLDS, buf * 4096 + t * 1024))
            e("s_add_u32 s%d, s%d, %d" % (sOFF, sWQ, (i * 16 + t * 4) * 8192))
            a.vmem("buffer_load_dwordx4 v%d, s[48:51], s%d offen%s lds" % (vWQoff[t & 1], sOFF, ntf), tag)
    def issue_wo(i, tag):
        for t in range(4):
            e("s_add_u32 m0, s%d, %d" % (sLDS, i * 4096 + t * 1024))
            e("s_add_u32 s%d, s%d, %d" % (sOFF, sWO, (i * 8 + t * 2) * 2048))
            a.vmem("buffer_load_dwordx4 v%d, s[52:55], s%d offen%s lds" % (vWOoff[t], sOFF, ntf), tag)

    for i in range(4):
        a.vmem("global_load_dwordx2 %s, v%d, s[4:5] offset:%d" % (vr(vX + 2 * i, 2), vA0, 32 * i), "x")
    chunks = [("wq", i) for i in range(4)] + [("k", i) for i in range(NCH)] + [("v", i) for i in range(NCH)]
    nstat = len(chunks)
    chunks += [("k", NCH), ("v", NCH), ("k", NCH + 1), ("v", NCH + 1)]
    assert nstat % 4 == 0
    def issue(n):
        kind, i = chunks[n]
        if kind == "wq": issue_wq(i, n % 4, n)
        else: issue_kv(kind, sKV, i * 4096, n % 4, n)
    for n in range(4): issue(n)
    stamp()

    for jj in range(4):
        e("v_add_u32 v%d, %d, v%d" % (vT[2], 4 * jj, lhi))
        e("v_xor_b32 v%d, v%d, v%d" % (vT[2], vT[2], l16))
        e("v_lshlrev_b32 v%d, 4, v%d" % (vT[2], vT[2]))
        e("v_lshl_add_u32 v%d, v%d, 8, v%d" % (vT[2], l16, vT[2]))
        e("v_add_u32 v%d, s%d, v%d" % (vKrd[jj], sLDS, vT[2]))
    e("v_lshrrev_b32 v%d, 2, v%d" % (vT[2], vLANE))
    e("v_and_b32 v%d, 7, v%d" % (vT[3], vT[2]))
    e("v_and_b32 v%d, 3, v%d" % (vT[4], vLANE))
    e("v_lshlrev_b32 v%d, 3, v%d" % (vT[4], vT[4]))
    e("v_lshl_add_u32 v%d, v%d, 8, v%d" % (vT[4], vT[2], vT[4]))
    e("v_add_u32 v%d, s%d, v%d" % (vT[4], sLDS, vT[4]))
    for dt in range(8):
        e("v_xor_b32 v%d, %d, v%d" % (vT[5], dt, vT[3]))
        e("v_lshl_add_u32 v%d, v%d, 5, v%d" % (vVrd[dt], vT[5], vT[4]))
    e("v_lshrrev_b32 v%d, 5, v%d" % (vT[2], vLANE))
    e("v_bfe_u32 v%d, v%d, 1, 4" % (vT[3], vLANE))
    e("v_and_b32 v%d, 1, v%d" % (vT[4], vLANE))
    e("v_lshlrev_b32 v%d, 4, v%d" % (vT[4], vT[4]))
    e("v_lshl_add_u32 v%d, v%d, 11, v%d" % (vT[4], vT[2], vT[4]))
    for t in range(4):
        e("v_add_u32 v%d, %d, v%d" % (vT[5], 2 * t, vT[2]))
        e("v_xor_b32 v%d, v%d, v%d" % (vT[5], vT[5], vT[3]))
        e("v_lshl_add_u32 v%d, v%d, 5, v%d" % (vWOoff[t], vT[5], vT[4]))
    e("s_and_b32 s%d, s%d, 3" % (sWO, sG3)); e("s_lshl_b32 s%d, s%d, 3" % (sWO, sWO)); e("s_add_u32 s%d, s%d, s%d" % (sWO, sWO, sHH3))
    e("s_lshl_b32 s%d, s%d, 18" % (sWO, sWO))
    e("s_lshl_b32 s%d, s%d, 16" % (sT2, sWAVE)); e("s_add_u32 s%d, s%d, s%d" % (sWO, sWO, sT2))
    e("s_lshl_b32 s%d, s%d, 9" % (sT2, sCB)); e("s_add_u32 s%d, s%d, s%d" % (sWO, sWO, sT2))
    e("s_lshl_b32 s%d, s%d, 8" % (sT2, sPAIR))
    e("s_add_u32 s%d, s30, s%d" % (sCNT, sT2)); e("s_addc_u32 s%d, s31, 0" % (sCNT + 1))

    def tr_reads(dst_fn, buf):
        for dt in range(8):
            e("ds_read_b64_tr_b16 %s, v%d offset:%d" % (dst_fn(dt), vVrd[dt], buf * 4096))

    for n in range(4):
        a.wait_vm(n)
        tr_reads(lambda dt: vr(vVF + 2 * dt, 2), n)
        e("s_waitcnt lgkmcnt(0)")
        issue(n + 4)
        for dt in range(8):
            c = "0" if n == 0 else vr(vO + 4 * dt, 4)
            e("v_mfma_f32_16x16x16_bf16 %s, %s, %s, %s" % (vr(vO + 4 * dt, 4), vr(vVF + 2 * dt, 2), vr(vX + 2 * n, 2), c))
    stamp()
    e("v_lshlrev_b32 v%d, 9, v%d" % (vA1, l16))
    e("v_lshl_add_u32 v%d, v%d, 4, v%d" % (vA1, lhi, vA1))
    e("s_lshl_b32 s%d, s%d, 11" % (sT2, sWAVE))
    e("v_add_u32 v%d, s%d, v%d" % (vA1, sT2, vA1))
    e("v_cmp_gt_u32 vcc, 4, v%d" % l16)
    nop(8)
    e("s_and_saveexec_b64 s[%d:%d], vcc" % (sEX, sEX + 1))
    for dt in range(8):
        e("ds_write_b128 v%d, %s offset:%d" % (vA1, vr(vO + 4 * dt, 4), L_QL + dt * 64))
    e("s_mov_b64 exec, -1")
    e("s_waitcnt lgkmcnt(0)")
    e("s_barrier")
    e("s_cmp_gt_u32 s%d, 1" % sWAVE)
    e("s_cbranch_scc1 L_noqpub")
    e("v_lshlrev_b32 v%d, 4, v0" % vA1)
    for w in range(4):
        e("ds_read_b128 %s, v%d offset:%d" % (vr(vG + 4 * w, 4), vA1, L_QL + w * 2048))
    e("s_lshr_b32 s%d, s%d, 3" % (sT0, sJ))
    e("s_lshl_b32 s%d, s%d, 3" % (sT2, sX)); e("s_add_u32 s%d, s%d, s%d" % (sT2, sT2, sHH1))
    e("s_lshl_b32 s%d, s%d, 2" % (sT2, sT2)); e("s_add_u32 s%d, s%d, s%d" % (sT2, sT2, sT0))
    e("s_lshl_b32 s%d, s%d, 11" % (sT2, sT2)); e("s_add_u32 s%d, s%d, %d" % (sT2, sT2, WS_QP))
    e("v_add_u32 v%d, s%d, v%d" % (vA2, sT2, vA1))
    e("s_waitcnt lgkmcnt(0)")
    for i in range(4):
        e("v_add_f32 v%d, v%d, v%d" % (vG + i, vG + i, vG + 4 + i))
        e("v_add_f32 v%d, v%d, v%d" % (vG + 8 + i, vG + 8 + i, vG + 12 + i))
    for i in range(4):
        e("v_add_f32 v%d, v%d, v%d" % (vG + i, vG + i, vG + 8 + i))
    for i in range(4):
        e("v_min_u32 v%d, -2, v%d" % (vG + i, vG + i))
    e("global_store_dwordx4 v%d, %s, %s sc1" % (vA2, vr(vG, 4), WS))
    a.label("L_noqpub")

    for n in range(4, nstat):
        kind, i = chunks[n]
        a.wait_vm(n)
        base = parked(kind, i)
        if kind == "k":
            for jj in range(4):
                e("ds_read_b128 %s, v%d offset:%d" % (ar(base + 4 * jj, 4), vKrd[jj], (n % 4) * 4096))
        else:
            tr_reads(lambda dt: ar(base + 2 * dt, 2), n % 4)
        e("s_waitcnt lgkmcnt(0)")
        issue(n + 4)
        ci = n - 4
        if ci == flag_at:
            e("v_mov_b32 v%d, 0" % vA3)
            a.vmem("global_load_dword v%d, v%d, %s sc1" % (vFL, vA3, DBG), "flag")
            e("s_cmp_lg_u32 s%d, 0" % sWAVE)
            e("s_cbranch_scc1 L_nogate1")
            e("s_lshr_b32 s%d, s2, 4" % sT2); e("s_and_b32 s%d, s%d, 3" % (sT2, sT2)); e("s_lshl_b32 s%d, s%d, 11" % (sT2, sT2))
            e("v_lshlrev_b32 v%d, 5, v%d" % (vA1, vLANE))
            e("v_add_u32 v%d, s%d, v%d" % (vA2, sT2, vA1))
            e("global_load_dwordx4 %s, v%d, s[4:5]" % (vr(vGT, 4), vA2))
            e("global_load_dwordx4 %s, v%d, s[4:5] offset:16" % (vr(vGT + 4, 4), vA2))
            e("global_load_dwordx4 %s, v%d, s[24:25]" % (vr(vGT + 8, 4), vA1))
            e("global_load_dwordx4 %s, v%d, s[24:25] offset:16" % (vr(vGT + 12, 4), vA1))
            a.label("L_nogate1")
        if ci == gather_at:
            assert gather_at >= flag_at + 4
            if "flag" in a.vm:
                a.wait_vm("flag")
            e("s_mov_b32 s%d, 0" % sSPIN)
            a.label("L_flagchk")
            e("v_readfirstlane_b32 s%d, v%d" % (sT2, vFL))
            e("s_cmp_ge_u32 s%d, 256" % sT2)
            e("s_cbranch_scc1 L_flagok")
            e("s_add_u32 s%d, s%d, 1" % (sSPIN, sSPIN))
            e("s_cmp_gt_u32 s%d, %d" % (sSPIN, SPIN_CAP))
            e("s_cbranch_scc1 L_flagok")
            e("global_load_dword v%d, v%d, %s sc1" % (vFL, vA3, DBG))
            e("s_waitcnt vmcnt(0)")
            e("s_branch L_flagchk")
            a.label("L_flagok")
            e("s_and_b32 s%d, s%d, 3" % (sT2, sBH)); e("s_lshl_b32 s%d, s%d, 2" % (sT3, sBR)); e("s_add_u32 s%d, s%d, s%d" % (sT2, sT2, sT3))
            e("s_lshl_b32 s%d, s%d, 16" % (sT2, sT2))
            e("s_lshr_b32 s%d, s%d, 2" % (sT3, sBH)); e("s_lshl_b32 s%d, s%d, 9" % (sT3, sT3)); e("s_add_u32 s%d, s%d, s%d" % (sT2, sT2, sT3))
            e("s_add_u32 s%d, s%d, %d" % (sT2, sT2, WS_QP))
            e("v_lshrrev_b32 v%d, 5, v0" % vA1); e("v_lshlrev_b32 v%d, 13, v%d" % (vA1, vA1))
            e("v_and_b32 v%d, 31, v0" % vA2); e("v_lshl_add_u32 v%d, v%d, 4, v%d" % (vA1, vA2, vA1))
            e("v_add_u32 v%d, s%d, v%d" % (vA1, sT2, vA1))
            e("v_add_u32 v%d, 4096, v%d" % (vA2, vA1))
            for ks in range(4):
                a.vmem("global_load_dwordx4 %s, v%d, %s offset:%d sc1" % (vr(vG + 4 * ks, 4), vA1 if ks < 2 else vA2, WS, (ks & 1) * 2048), "qg")
    stamp()
    if "qg" in a.vm:
        a.wait_vm("qg")
    e("s_mov_b32 s%d, 0" % sSPIN)
    a.label("L_qchk")
    e("v_max3_u32 v%d, v%d, v%d, v%d" % (vT[2], vG, vG + 1, vG + 2))
    for i in range(3, 15, 2):
        e("v_max3_u32 v%d, v%d, v%d, v%d" % (vT[2], vT[2], vG + i, vG + i + 1))
    e("v_max_u32 v%d, v%d, v%d" % (vT[2], vT[2], vG + 15))
    e("v_cmp_eq_u32 vcc, -1, v%d" % vT[2])
    e("s_nop 4")
    e("s_cbranch_vccz L_qok")
    e("s_add_u32 s%d, s%d, 1" % (sSPIN, sSPIN))
    e("s_cmp_gt_u32 s%d, %d" % (sSPIN, SPIN_CAP))
    e("s_cbranch_scc1 L_qok")
    for ks in range(4):
        e("global_load_dwordx4 %s, v%d, %s offset:%d sc1" % (vr(vG + 4 * ks, 4), vA1 if ks < 2 else vA2, WS, (ks & 1) * 2048))
    e("s_waitcnt vmcnt(0)")
    e("s_branch L_qchk")
    a.label("L_qok")
    for i in range(4):
        e("v_add_f32 v%d, v%d, v%d" % (vG + i, vG + i, vG + 4 + i))
        e("v_add_f32 v%d, v%d, v%d" % (vG + 8 + i, vG + 8 + i, vG + 12 + i))
    for i in range(4):
        e("v_add_f32 v%d, v%d, v%d" % (vG + i, vG + i, vG + 8 + i))
    e("v_cvt_pk_bf16_f32 v%d, v%d, v%d" % (vG + 4, vG, vG + 1))
    e("v_cvt_pk_bf16_f32 v%d, v%d, v%d" % (vG + 5, vG + 2, vG + 3))
    e("v_lshlrev_b32 v%d, 3, v0" % vA1)
    e("ds_write_b64 v%d, %s offset:%d" % (vA1, vr(vG + 4, 2), L_QB))
    e("s_cmp_lg_u32 s%d, 0" % sWAVE)
    e("s_cbranch_scc1 L_nogate2")
    e("v_mov_b32 v%d, 0" % vGATE)
    for i in range(8):
        e("v_lshlrev_b32 v%d, 16, v%d" % (vT[2], vGT + i))
        e("v_lshlrev_b32 v%d, 16, v%d" % (vT[3], vGT + 8 + i))
        e("v_fmac_f32 v%d, v%d, v%d" % (vGATE, vT[2], vT[3]))
        e("v_and_b32 v%d, 0xffff0000, v%d" % (vT[2], vGT + i))
        e("v_and_b32 v%d, 0xffff0000, v%d" % (vT[3], vGT + 8 + i))
        e("v_fmac_f32 v%d, v%d, v%d" % (vGATE, vT[2], vT[3]))
    def allreduce_rows(v, t, op):
        e("v_mov_b32 v%d, v%d" % (t, v)); nop(2)
        e("v_permlane32_swap_b32 v%d, v%d" % (v, t)); nop(1)
        e("%s v%d, v%d, v%d" % (op, v, v, t))
        e("v_mov_b32 v%d, v%d" % (t, v)); nop(2)
        e("v_permlane16_swap_b32 v%d, v%d" % (v, t)); nop(1)
        e("%s v%d, v%d, v%d" % (op, v, v, t))
    def rowsum16(v, t, rors):
        for r in rors:
            nop(2)
            e("v_mov_b32_dpp v%d, v%d row_ror:%d row_mask:0xf bank_mask:0xf" % (t, v, r))
            e("v_add_f32 v%d, v%d, v%d" % (v, v, t))
    rowsum16(vGATE, vT[2], (8, 4, 2, 1))
    allreduce_rows(vGATE, vT[2], "v_add_f32")
    e("v_mul_f32 v%d, 0x%08x, v%d" % (vGATE, f2u(-1.4426950408889634), vGATE))
    e("v_exp_f32 v%d, v%d" % (vGATE, vGATE)); nop(1)
    e("v_add_f32 v%d, 1.0, v%d" % (vGATE, vGATE))
    e("v_rcp_f32 v%d, v%d" % (vGATE, vGATE))
    a.label("L_nogate2")
    e("s_waitcnt lgkmcnt(0)")
    e("s_barrier")
    e("v_and_b32 v%d, 7, v%d" % (vA1, vLANE)); e("v_lshlrev_b32 v%d, 8, v%d" % (vA1, vA1))
    e("v_lshrrev_b32 v%d, 4, v%d" % (vA2, vLANE))
    e("v_lshl_add_u32 v%d, v%d, 4, v%d" % (vA1, vA2, vA1))
    for jj in range(4):
        e("ds_read_b128 %s, v%d offset:%d" % (vr(vQ + 4 * jj, 4), vA1, L_QB + jj * 64))
    e("s_waitcnt lgkmcnt(0)")
    e("s_mov_b32 s%d, 1" % sCLAIM)
    e("s_atomic_add s%d, s[%d:%d], 0x0 glc" % (sCLAIM, sCNT, sCNT + 1))
    stamp()
    for jj in range(4):
        for i in range(NCH):
            c = "0" if jj == 0 else vr(vS + 4 * i, 4)
            e("v_mfma_f32_16x16x32_bf16 %s, %s, %s, %s" % (vr(vS + 4 * i, 4), ar(parked("k", i) + 4 * jj, 4), vr(vQ + 4 * jj, 4), c))
    nop(8)
    nS = 4 * NCH
    e("v_max3_f32 v%d, v%d, v%d, v%d" % (vM, vS, vS + 1, vS + 2))
    i = 3
    while i + 1 < nS:
        e("v_max3_f32 v%d, v%d, v%d, v%d" % (vM, vM, vS + i, vS + i + 1)); i += 2
    e("v_max_f32 v%d, v%d, v%d" % (vM, vM, vS + nS - 1))
    allreduce_rows(vM, vT[2], "v_max_f32")
    e("v_mul_f32 v%d, s%d, v%d" % (vMC, sC, vM))
    for i in range(nS):
        e("v_fma_f32 v%d, v%d, s%d, -v%d" % (vS + i, vS + i, sC, vMC))
    for i in range(nS):
        e("v_exp_f32 v%d, v%d" % (vS + i, vS + i))
    nop(1)
    e("v_add_f32 v%d, v%d, v%d" % (vL, vS, vS + 1))
    e("v_add_f32 v%d, v%d, v%d" % (vT[2], vS + 2, vS + 3))
    for i in range(4, nS, 2):
        e("v_add_f32 v%d, v%d, v%d" % (vL, vL, vS + i))
        e("v_add_f32 v%d, v%d, v%d" % (vT[2], vT[2], vS + i + 1))
    e("v_add_f32 v%d, v%d, v%d" % (vL, vL, vT[2]))
    for i in range(2 * NCH):
        e("v_cvt_pk_bf16_f32 v%d, v%d, v%d" % (vP + i, vS + 2 * i, vS + 2 * i + 1))
    nop(2)
    for i in range(NCH):
        for dt in range(8):
            c = "0" if i == 0 else vr(vO + 4 * dt, 4)
            e("v_mfma_f32_16x16x16_bf16 %s, %s, %s, %s" % (vr(vO + 4 * dt, 4), ar(parked("v", i) + 2 * dt, 2), vr(vP + 2 * i, 2), c))
    stamp()
    e("s_mov_b32 s%d, 0" % sST)
    a.label("L_loop")
    for h in range(2):
        e("s_waitcnt vmcnt(12) lgkmcnt(0)")
        for jj in range(4):
            e("ds_read_b128 %s, v%d offset:%d" % (vr(vKF + 4 * jj, 4), vKrd[jj], 2 * h * 4096))
        e("s_cmp_lg_u32 s%d, 0" % sST)
        e("s_cbranch_scc1 L_st2_%d" % h)
        e("s_cmp_ge_u32 s%d, %d" % (sCLAIM, pool_units))
        e("s_cbranch_scc1 L_st1_%d" % h)
        e("s_lshl_b32 s%d, s%d, 12" % (sUNIT, sCLAIM)); e("s_add_u32 s%d, s%d, s%d" % (sUNIT, sUNIT, sPOOL))
        e("s_waitcnt lgkmcnt(0)")
        issue_kv("k", sUNIT, 0, 2 * h, "x")
        e("s_branch L_ka_%d" % h)
        a.label("L_st2_%d" % h)
        e("s_mov_b32 s%d, 1" % sST)
        a.label("L_st1_%d" % h)
        e("s_add_u32 s%d, s%d, 1" % (sST, sST))
        e("s_waitcnt lgkmcnt(0)")
        issue_wo(2 * h, "x")
        a.label("L_ka_%d" % h)
        for jj in range(4):
            c = "0" if jj == 0 else vr(vS, 4)
            e("v_mfma_f32_16x16x32_bf16 %s, %s, %s, %s" % (vr(vS, 4), vr(vKF + 4 * jj, 4), vr(vQ + 4 * jj, 4), c))
        nop(8)
        e("v_max3_f32 v%d, v%d, v%d, v%d" % (vT[3], vS, vS + 1, vS + 2))
        e("v_max_f32 v%d, v%d, v%d" % (vT[3], vT[3], vS + 3))
        allreduce_rows(vT[3], vT[2], "v_max_f32")
        e("v_max_f32 v%d, v%d, v%d" % (vM, vM, vT[3]))
        e("v_mul_f32 v%d, s%d, v%d" % (vT[3], sC, vM))
        e("v_sub_f32 v%d, v%d, v%d" % (vAL, vMC, vT[3]))
        e("v_mov_b32 v%d, v%d" % (vMC, vT[3]))
        e("v_exp_f32 v%d, v%d" % (vAL, vAL))
        for i in range(4):
            e("v_fma_f32 v%d, v%d, s%d, -v%d" % (vS + i, vS + i, sC, vMC))
        for i in range(4):
            e("v_exp_f32 v%d, v%d" % (vS + i, vS + i))
        for i in range(32):
            e("v_mul_f32 v%d, v%d, v%d" % (vO + i, vAL, vO + i))
        e("v_add_f32 v%d, v%d, v%d" % (vT[2], vS, vS + 1))
        e("v_add_f32 v%d, v%d, v%d" % (vT[3], vS + 2, vS + 3))
        e("v_add_f32 v%d, v%d, v%d" % (vT[2], vT[2], vT[3]))
        e("v_fma_f32 v%d, v%d, v%d, v%d" % (vL, vL, vAL, vT[2]))
        e("v_cvt_pk_bf16_f32 v%d, v%d, v%d" % (vP, vS, vS + 1))
        e("v_cvt_pk_bf16_f32 v%d, v%d, v%d" % (vP + 1, vS + 2, vS + 3))
        e("s_waitcnt vmcnt(12)")
        tr_reads(lambda dt: vr(vVF + 2 * dt, 2), 2 * h + 1)
        e("s_waitcnt lgkmcnt(0)")
        e("s_cmp_lg_u32 s%d, 0" % sST)
        e("s_cbranch_scc1 L_vw_%d" % h)
        issue_kv("v", sUNIT, 0, 2 * h + 1, "x")
        e("s_mov_b32 s%d, 1" % sCLAIM)
        e("s_atomic_add s%d, s[%d:%d], 0x0 glc" % (sCLAIM, sCNT, sCNT + 1))
        e("s_branch L_va_%d" % h)
        a.label("L_vw_%d" % h)
        issue_wo(2 * h + 1, "x")
        a.label("L_va_%d" % h)
        for dt in range(8):
            e("v_mfma_f32_16x16x16_bf16 %s, %s, %s, %s" % (vr(vO + 4 * dt, 4), vr(vVF + 2 * dt, 2), vr(vP, 2), vr(vO + 4 * dt, 4)))
        e("s_cmp_eq_u32 s%d, 2" % sST)
        e("s_cbranch_scc1 L_done")
    e("s_branch L_loop")
    a.label("L_done")
    a.vm = []
    stamp()
    allreduce_rows(vL, vT[2], "v_add_f32")
    e("v_and_b32 v%d, 15, v%d" % (vT[0], vLANE)); e("v_lshrrev_b32 v%d, 4, v%d" % (vT[1], vLANE))
    e("v_lshlrev_b32 v%d, 9, v%d" % (vA1, vT[0]))
    e("v_lshl_add_u32 v%d, v%d, 4, v%d" % (vA1, vT[1], vA1))
    e("s_lshl_b32 s%d, s%d, 12" % (sT2, sWAVE))
    e("v_add_u32 v%d, s%d, v%d" % (vA1, sT2, vA1))
    e("s_lshl_b32 s%d, s%d, 3" % (sT2, sWAVE))
    e("v_lshlrev_b32 v%d, 5, v%d" % (vA2, vLANE)); e("v_add_u32 v%d, s%d, v%d" % (vA2, sT2, vA2))
    e("v_mov_b32 v%d, v%d" % (vM, vMC))
    e("v_cmp_gt_u32 vcc, 8, v%d" % vT[0])
    nop(2)
    e("s_and_saveexec_b64 s[%d:%d], vcc" % (sEX, sEX + 1))
    for dt in range(8):
        e("ds_write_b128 v%d, %s offset:%d" % (vA1, vr(vO + 4 * dt, 4), L_OB + dt * 64))
    e("s_mov_b64 exec, 0xff")
    e("ds_write_b64 v%d, %s offset:%d" % (vA2, vr(vM, 2), L_MLB))
    e("s_mov_b64 exec, -1")
    e("s_waitcnt lgkmcnt(0)")
    e("s_barrier")
    e("v_lshlrev_b32 v%d, 4, v0" % vA1)
    e("v_and_b32 v%d, 0xe0, v0" % vA2)
    e("ds_read_b128 %s, v%d offset:%d" % (vr(vS, 4), vA2, L_MLB))
    e("ds_read_b128 %s, v%d offset:%d" % (vr(vS + 4, 4), vA2, L_MLB + 16))
    for w in range(4):
        e("ds_read_b128 %s, v%d offset:%d" % (vr(vG + 4 * w, 4), vA1, L_OB + w * 4096))
    e("s_lshl_b32 s%d, s%d, 3" % (sT2, sPAIR)); e("s_add_u32 s%d, s%d, s%d" % (sT2, sT2, sSPLIT))
    e("s_lshl_b32 s%d, s%d, 12" % (sT2, sT2)); e("s_add_u32 s%d, s%d, %d" % (sT2, sT2, WS_OP))
    e("v_add_u32 v%d, s%d, v%d" % (vA1, sT2, vA1))
    e("s_lshl_b32 s%d, s%d, 9" % (sT2, sPAIR)); e("s_lshl_b32 s%d, s%d, 3" % (sT3, sSPLIT))
    e("s_add_u32 s%d, s%d, s%d" % (sT2, sT2, sT3)); e("s_add_u32 s%d, s%d, %d" % (sT2, sT2, WS_ML))
    e("v_lshlrev_b32 v%d, 1, v%d" % (vA2, vA2)); e("v_add_u32 v%d, s%d, v%d" % (vA2, sT2, vA2))
    e("s_waitcnt lgkmcnt(4)")
    e("v_max3_f32 v%d, v%d, v%d, v%d" % (vM, vS, vS + 2, vS + 4))
    e("v_max_f32 v%d, v%d, v%d" % (vM, vM, vS + 6))
    for w in range(4):
        e("v_sub_f32 v%d, v%d, v%d" % (vS + 2 * w, vS + 2 * w, vM))
    for w in range(4):
        e("v_exp_f32 v%d, v%d" % (vS + 2 * w, vS + 2 * w))
    nop(1)
    e("v_mul_f32 v%d, v%d, v%d" % (vL, vS, vS + 1))
    for w in range(1, 4):
        e("v_fmac_f32 v%d, v%d, v%d" % (vL, vS + 2 * w, vS + 2 * w + 1))
    e("s_waitcnt lgkmcnt(0)")
    for i in range(4):
        e("v_mul_f32 v%d, v%d, v%d" % (vG + i, vS, vG + i))
    for w in range(1, 4):
        for i in range(4):
            e("v_fmac_f32 v%d, v%d, v%d" % (vG + i, vS + 2 * w, vG + 4 * w + i))
    for i in range(4):
        e("v_min_u32 v%d, -2, v%d" % (vG + i, vG + i))
    e("v_min_u32 v%d, -2, v%d" % (vM, vM)); e("v_min_u32 v%d, -2, v%d" % (vL, vL))
    e("global_store_dwordx4 v%d, %s, %s sc1" % (vA1, vr(vG, 4), WS))
    e("s_mov_b32 exec_lo, 1"); e("s_mov_b32 exec_hi, 1")
    e("global_store_dwordx2 v%d, %s, %s sc1" % (vA2, vr(vM, 2), WS))
    e("s_mov_b64 exec, -1")
    stamp()
    e("s_lshr_b32 s%d, s%d, 2" % (sT2, sG3)); e("s_lshl_b32 s%d, s%d, 4" % (sT2, sT2))
    e("s_and_b32 s%d, s%d, 3" % (sT3, sG3)); e("s_add_u32 s%d, s%d, s%d" % (sT2, sT2, sT3))
    e("s_lshl_b32 s%d, s%d, 2" % (sT3, sWAVE)); e("s_add_u32 s%d, s%d, s%d" % (sT2, sT2, sT3))
    e("s_lshl_b32 s%d, s%d, 15" % (sT3, sT2)); e("s_lshl_b32 s%d, s%d, 9" % (sT0, sHH3)); e("s_add_u32 s%d, s%d, s%d" % (sT3, sT3, sT0))
    e("s_add_u32 s%d, s%d, %d" % (sT3, sT3, WS_OP))
    e("v_lshlrev_b32 v%d, 3, v%d" % (vA1, vLANE)); e("v_add_u32 v%d, s%d, v%d" % (vA1, sT3, vA1))
    vAs = [vKF + i for i in range(8)]
    for s in range(8):
        e("v_add_u32 v%d, %d, v%d" % (vAs[s], s * 4096, vA1))
    e("s_lshl_b32 s%d, s%d, 9" % (sT3, sT2)); e("s_lshl_b32 s%d, s%d, 6" % (sT0, sHH3)); e("s_add_u32 s%d, s%d, s%d" % (sT3, sT3, sT0))
    e("s_add_u32 s%d, s%d, %d" % (sT3, sT3, WS_ML))
    e("v_mov_b32 v%d, s%d" % (vA2, sT3))
    e("s_mov_b32 s%d, 0" % sSPIN)
    a.label("L_g3")
    for s in range(8):
        e("global_load_dwordx2 %s, v%d, %s sc1" % (vr(vG + 2 * s, 2), vAs[s], WS))
    for i in range(4):
        e("global_load_dwordx4 %s, v%d, %s offset:%d sc1" % (vr(vS + 4 * i, 4), vA2, WS, i * 16))
    e("s_waitcnt vmcnt(0)")
    e("v_max3_u32 v%d, v%d, v%d, v%d" % (vT[2], vG, vG + 1, vG + 2))
    for i in range(3, 15, 2):
        e("v_max3_u32 v%d, v%d, v%d, v%d" % (vT[2], vT[2], vG + i, vG + i + 1))
    e("v_max3_u32 v%d, v%d, v%d, v%d" % (vT[3], vG + 15, vS, vS + 1))
    for i in range(2, 16, 2):
        e("v_max3_u32 v%d, v%d, v%d, v%d" % (vT[3], vT[3], vS + i, vS + i + 1))
    e("v_max_u32 v%d, v%d, v%d" % (vT[2], vT[2], vT[3]))
    e("v_cmp_eq_u32 vcc, -1, v%d" % vT[2])
    e("s_add_u32 s%d, s%d, 1" % (sSPIN, sSPIN))
    e("s_cmp_gt_u32 s%d, %d" % (sSPIN, SPIN_CAP))
    e("s_cbranch_scc1 L_g3ok")
    e("s_nop 2")
    e("s_cbranch_vccnz L_g3")
    a.label("L_g3ok")
    stamp()
    e("v_max3_f32 v%d, v%d, v%d, v%d" % (vM, vS, vS + 2, vS + 4))
    e("v_max3_f32 v%d, v%d, v%d, v%d" % (vM, vM, vS + 6, vS + 8))
    e("v_max3_f32 v%d, v%d, v%d, v%d" % (vM, vM, vS + 10, vS + 12))
    e("v_max_f32 v%d, v%d, v%d" % (vM, vM, vS + 14))
    for s in range(8):
        e("v_sub_f32 v%d, v%d, v%d" % (vS + 2 * s, vS + 2 * s, vM))
    for s in range(8):
        e("v_exp_f32 v%d, v%d" % (vS + 2 * s, vS + 2 * s))
    nop(1)
    e("v_mul_f32 v%d, v%d, v%d" % (vL, vS, vS + 1))
    e("v_mul_f32 v%d, v%d, v%d" % (vT[2], vS, vG))
    e("v_mul_f32 v%d, v%d, v%d" % (vT[3], vS, vG + 1))
    for s in range(1, 8):
        e("v_fmac_f32 v%d, v%d, v%d" % (vL, vS + 2 * s, vS + 2 * s + 1))
        e("v_fmac_f32 v%d, v%d, v%d" % (vT[2], vS + 2 * s, vG + 2 * s))
        e("v_fmac_f32 v%d, v%d, v%d" % (vT[3], vS + 2 * s, vG + 2 * s + 1))
    e("v_rcp_f32 v%d, v%d" % (vL, vL)); nop(1)
    e("v_mul_f32 v%d, v%d, v%d" % (vT[2], vT[2], vL))
    e("v_mul_f32 v%d, v%d, v%d" % (vT[3], vT[3], vL))
    e("v_cvt_pk_bf16_f32 v%d, v%d, v%d" % (vT[2], vT[2], vT[3]))
    e("v_lshlrev_b32 v%d, 2, v0" % vA1)
    e("ds_write_b32 v%d, v%d offset:%d" % (vA1, vT[2], L_OL))
    e("v_lshrrev_b32 v%d, 2, v%d" % (vT[2], vLANE))
    e("v_and_b32 v%d, 7, v%d" % (vT[3], vT[2]))
    e("v_and_b32 v%d, 3, v%d" % (vT[4], vLANE)); e("v_lshlrev_b32 v%d, 3, v%d" % (vT[4], vT[4]))
    e("v_lshl_add_u32 v%d, v%d, 9, v%d" % (vT[4], vT[2], vT[4]))
    e("v_add_u32 v%d, %d, v%d" % (vT[4], L_RING, vT[4]))
    e("s_lshl_b32 s%d, s%d, 2" % (sT2, sWAVE))
    vWr = [vKF + 8 + i for i in range(4)]
    for ct in range(4):
        e("s_add_u32 s%d, s%d, %d" % (sT3, sT2, ct))
        e("v_xor_b32 v%d, s%d, v%d" % (vT[5], sT3, vT[3]))
        e("v_lshl_add_u32 v%d, v%d, 5, v%d" % (vWr[ct], vT[5], vT[4]))
    e("v_and_b32 v%d, 3, v%d" % (vA1, vLANE)); e("v_lshlrev_b32 v%d, 8, v%d" % (vA1, vA1))
    e("v_lshrrev_b32 v%d, 4, v%d" % (vA2, vLANE)); e("v_lshl_add_u32 v%d, v%d, 3, v%d" % (vA1, vA2, vA1))
    e("s_waitcnt lgkmcnt(0)")
    e("s_barrier")
    for i in range(8):
        e("ds_read_b64 %s, v%d offset:%d" % (vr(vQ + 2 * i, 2), vA1, L_OL + i * 32))
    for kk in range(4):
        for ct in range(4):
            for hh in range(2):
                e("ds_read_b64_tr_b16 %s, v%d offset:%d" % (ar((kk * 4 + ct) * 4 + 2 * hh, 2), vWr[ct], (kk * 32 + hh * 16) * 512))
    e("s_lshl_b32 s%d, s%d, 3" % (sT2, sG3)); e("s_add_u32 s%d, s%d, s%d" % (sT2, sT2, sHH3))
    e("s_lshl_b32 s%d, s%d, 2" % (sT2, sT2)); e("s_add_u32 s%d, s%d, s%d" % (sT2, sT2, sCB))
    e("s_lshl_b32 s%d, s%d, 12" % (sT2, sT2)); e("s_add_u32 s%d, s%d, %d" % (sT2, sT2, WS_OUTP))
    e("s_lshl_b32 s%d, s%d, 8" % (sT3, sWAVE)); e("s_add_u32 s%d, s%d, s%d" % (sT2, sT2, sT3))
    e("v_and_b32 v%d, 15, v%d" % (vT[0], vLANE))
    e("v_lshlrev_b32 v%d, 10, v%d" % (vA1, vT[0]))
    e("v_lshl_add_u32 v%d, v%d, 4, v%d" % (vA1, vA2, vA1))
    e("v_add_u32 v%d, s%d, v%d" % (vA1, sT2, vA1))
    e("v_cmp_gt_u32 vcc, 4, v%d" % vT[0])
    e("s_waitcnt lgkmcnt(0)")
    for kk in range(4):
        for ct in range(4):
            c = "0" if kk == 0 else vr(vO + 4 * ct, 4)
            e("v_mfma_f32_16x16x32_bf16 %s, %s, %s, %s" % (vr(vO + 4 * ct, 4), ar((kk * 4 + ct) * 4, 4), vr(vQ + 4 * kk, 4), c))
    nop(8)
    for i in range(16):
        e("v_min_u32 v%d, -2, v%d" % (vO + i, vO + i))
    e("s_and_saveexec_b64 s[%d:%d], vcc" % (sEX, sEX + 1))
    for ct in range(4):
        e("global_store_dwordx4 v%d, %s, %s offset:%d sc1" % (vA1, vr(vO + 4 * ct, 4), WS, ct * 64))
    e("s_mov_b64 exec, -1")
    stamp()
    e("s_cmp_lg_u32 s%d, 0" % sWAVE)
    e("s_cbranch_scc1 L_fin")
    e("s_lshl_b32 s%d, s2, 6" % sT2); e("s_add_u32 s%d, s%d, %d" % (sT2, sT2, WS_OUTP))
    e("v_lshrrev_b32 v%d, 2, v%d" % (vA1, vLANE)); e("v_lshlrev_b32 v%d, 14, v%d" % (vA1, vA1))
    e("v_and_b32 v%d, 3, v%d" % (vA2, vLANE)); e("v_lshl_add_u32 v%d, v%d, 4, v%d" % (vA1, vA2, vA1))
    e("v_add_u32 v%d, s%d, v%d" % (vAs[0], sT2, vA1))
    for i in range(1, 4):
        e("v_add_u32 v%d, %d, v%d" % (vAs[i], i * 16 * 16384, vAs[0]))
    e("s_lshr_b32 s%d, s2, 4" % sT2); e("s_and_b32 s%d, s%d, 3" % (sT2, sT2)); e("s_lshl_b32 s%d, s%d, 11" % (sT2, sT2))
    e("s_lshr_b32 s%d, s2, 6" % sT3); e("s_lshl_b32 s%d, s%d, 9" % (sT3, sT3)); e("s_add_u32 s%d, s%d, s%d" % (sT2, sT2, sT3))
    e("s_and_b32 s%d, s2, 15" % sT3); e("s_lshl_b32 s%d, s%d, 5" % (sT3, sT3)); e("s_add_u32 s%d, s%d, s%d" % (sT2, sT2, sT3))
    e("v_lshlrev_b32 v%d, 3, v%d" % (vA2, vA2)); e("v_add_u32 v%d, s%d, v%d" % (vA2, sT2, vA2))
    e("v_sub_f32 v%d, 1.0, v%d" % (vAL, vGATE))
    e("s_mov_b32 s%d, 0" % sSPIN)
    a.label("L_g4")
    for i in range(4):
        e("global_load_dwordx4 %s, v%d, %s sc1" % (vr(vG + 4 * i, 4), vAs[i], WS))
    e("s_waitcnt vmcnt(0)")
    e("v_max3_u32 v%d, v%d, v%d, v%d" % (vT[2], vG, vG + 1, vG + 2))
    for i in range(3, 15, 2):
        e("v_max3_u32 v%d, v%d, v%d, v%d" % (vT[2], vT[2], vG + i, vG + i + 1))
    e("v_max_u32 v%d, v%d, v%d" % (vT[2], vT[2], vG + 15))
    e("v_cmp_eq_u32 vcc, -1, v%d" % vT[2])
    e("s_add_u32 s%d, s%d, 1" % (sSPIN, sSPIN))
    e("s_cmp_gt_u32 s%d, %d" % (sSPIN, SPIN_CAP))
    e("s_cbranch_scc1 L_g4ok")
    e("s_nop 2")
    e("s_cbranch_vccnz L_g4")
    a.label("L_g4ok")
    for i in range(4):
        e("v_add_f32 v%d, v%d, v%d" % (vG + i, vG + i, vG + 4 + i))
        e("v_add_f32 v%d, v%d, v%d" % (vG + 8 + i, vG + 8 + i, vG + 12 + i))
    for i in range(4):
        e("v_mul_f32 v%d, v%d, v%d" % (vG + i, vG + i, vGATE))
    for i in range(4):
        e("v_fmac_f32 v%d, v%d, v%d" % (vG + i, vG + 8 + i, vAL))
    for r in (8, 4):
        nop(1)
        for i in range(4):
            e("v_mov_b32_dpp v%d, v%d row_ror:%d row_mask:0xf bank_mask:0xf" % (vG + 4 + i, vG + i, r))
        for i in range(4):
            e("v_add_f32 v%d, v%d, v%d" % (vG + i, vG + i, vG + 4 + i))
    for sw in ("v_permlane32_swap_b32", "v_permlane16_swap_b32"):
        for i in range(4):
            e("v_mov_b32 v%d, v%d" % (vG + 4 + i, vG + i))
        nop(2)
        for i in range(4):
            e("%s v%d, v%d" % (sw, vG + i, vG + 4 + i))
        nop(1)
        for i in range(4):
            e("v_add_f32 v%d, v%d, v%d" % (vG + i, vG + i, vG + 4 + i))
    e("v_cvt_pk_bf16_f32 v%d, v%d, v%d" % (vG + 4, vG, vG + 1))
    e("v_cvt_pk_bf16_f32 v%d, v%d, v%d" % (vG + 5, vG + 2, vG + 3))
    e("s_mov_b64 exec, 0xf")
    e("global_store_dwordx2 v%d, %s, s[26:27]" % (vA2, vr(vG + 4, 2)))
    e("s_mov_b64 exec, -1")
    a.label("L_fin")
    stamp()
    if stamps:
        NST = len(stamp_regs)
        e("s_waitcnt lgkmcnt(0)")
        e("s_lshl_b32 s%d, s2, 2" % sT2); e("s_add_u32 s%d, s%d, s%d" % (sT2, sT2, sWAVE))
        e("s_mul_i32 s%d, s%d, %d" % (sT2, sT2, NST * 8))
        e("s_add_u32 s%d, s%d, 0x%x" % (sT2, sT2, WS_STAMP))
        e("v_mov_b32 v%d, s%d" % (vA1, sT2))
        e("s_mov_b64 exec, 1")
        for i, r in enumerate(stamp_regs):
            e("v_mov_b32 v%d, s%d" % (vG, r)); e("v_mov_b32 v%d, s%d" % (vG + 1, r + 1))
            e("global_store_dwordx2 v%d, %s, %s offset:%d" % (vA1, vr(vG, 2), WS, i * 8))
            nop(2)
        print("stamps:", NST, file=sys.stderr)
    a.label("L_end")
    return wrap(a.text(), 256, 256, L_END, 512, accum=256)

if __name__ == "__main__":
    open("full.s", "w").write(gen())
    open("full_st.s", "w").write(gen(stamps=True))
```

```python
import sys, struct
from asmlib import *

def f2u(f):
    return struct.unpack("<I", struct.pack("<f", f))[0]

WS_CNT = 0
WS_QP = 0x10000
WS_OP = 0x100000
WS_ML = 0x200000
WS_OUTP = 0x300000
WS_STAMP = 0x4000000
OBS = 528
L_QL = 0
L_QB = L_QL + 4 * 4 * OBS
L_OB = L_QB + 2048
L_MLB = L_OB + 4 * 8 * OBS
L_OL = L_MLB + 256
L_CNT = L_OL + 1024
L_RING = 32768
L_END = L_RING + 65536
assert L_CNT + 64 <= L_RING and L_QB % 16 == 0 and L_OB % 16 == 0 and L_MLB % 16 == 0
SPIN_CAP = 200000

def gen(NS=5, nt=True, stamps=False, flag_at=3, gather_at=8, tailst=False, NP3=1, NP4=1, g3_first=4, g4_wait=True, dbgst=False):
    a = Asm()
    e = a.e
    ntf = " nt" if nt else ""
    NCH = 2 * NS
    stat_keys = NS * 32 + 32
    pool_base = 32 * stat_keys * 256
    pool_units = (8192 - 32 * stat_keys) // 16
    CEXP = 1.4426950408889634 / (128.0 ** 0.5)

    vLANE = 1
    vKoff = [2, 3, 4, 5]
    vVoff = [6, 7]
    vWQoff = [8, 9]
    vWOoff = [10, 11, 12, 13]
    vKrd = [14, 15, 16, 17]
    vVrd = list(range(18, 26))
    vT = list(range(26, 32))
    vQ = 32
    vO = 48
    vS = 80
    vP = 120
    vKF = 140
    vVF = 156
    vM, vL, vMC, vAL = 172, 173, 174, 175
    vX = 176
    vG = 184
    vGT = 200
    vGATE = 216
    vA0, vA1, vA2, vA3 = 217, 218, 219, 220
    vFL = 221
    vZERO, vONE = 222, 223
    vMARK = 224
    cOBw, cMLw, cOBr, cMLr, cOPst, cMLst, cML3, cOfr, cOUT, cFo = range(228, 238)
    cG3 = 238
    cWr = list(range(246, 250))
    cF = list(range(250, 254))
    cT4 = 254
    def vr(b, n): return "v[%d:%d]" % (b, b + n - 1)
    def ar(b, n): return "a[%d:%d]" % (b, b + n - 1)
    def parkK(i): return i * 16
    def parkV(i, dt, n):
        u = i // 2
        off = dt * 4 + (i & 1) * 2
        base = NCH * 16 + u * 32
        if base + 32 <= 256:
            return ar(base + off, n)
        if NS == 5 and u == 3: return vr(vKF + off, n)
        if NS == 5 and u == 4: return ar(off, n)
        raise Exception("no parking")
    sWAVE, sX, sJ, sPAIR, sSPLIT = 32, 33, 34, 35, 36
    sBR, sBH, sHH1 = 37, 38, 39
    sKV, sT0, sLDS, sWQ, sWO = 56, 57, 58, 59, 60
    sT1, sOFF, sPOOL, sCLAIM, sUNIT = 61, 62, 63, 64, 65
    sST, sSPIN, sC = 66, 67, 68
    sQPo = 69
    sCNT = 70
    sHI = 72
    sG3, sHH3, sCB = 74, 75, 76
    sT2, sT3 = 77, 78
    sMK8, sMK4 = 14, 16
    WS = "s[30:31]"; DBG = "s[28:29]"
    stamp_regs = []
    def stamp(early=False, tail=False):
        if stamps and not (early and tailst) and not (tail and not tailst):
            r = 80 + 2 * len(stamp_regs)
            assert r + 1 <= 101
            stamp_regs.append(r)
            e("s_memrealtime s[%d:%d]" % (r, r + 1))
    def nop(n):
        while n > 0:
            k = min(n, 16)
            e("s_nop %d" % (k - 1)); n -= k
    def S(fmt, *args): e(fmt % args)

    e("s_cmp_ge_u32 s2, 256")
    e("s_cbranch_scc1 L_end")
    stamp()
    e("s_load_dwordx16 s[4:19], s[0:1], 0")
    e("s_load_dwordx8 s[20:27], s[0:1], 64")
    e("s_load_dwordx4 s[28:31], s[0:1], 96")
    S("v_lshrrev_b32 v%d, 6, v0", vT[0])
    S("v_and_b32 v%d, 63, v0", vLANE)
    S("v_readfirstlane_b32 s%d, v%d", sWAVE, vT[0])
    S("v_mov_b32 v%d, 0", vZERO)
    S("v_mov_b32 v%d, 1", vONE)
    S("v_lshlrev_b32 v%d, 2, v%d", vT[2], vLANE)
    S("v_and_b32 v%d, 60, v%d", vT[2], vT[2])
    S("ds_write_b32 v%d, v%d offset:%d", vT[2], vZERO, L_CNT)
    S("s_and_b32 s%d, s2, 7", sX)
    S("s_lshr_b32 s%d, s2, 3", sJ)
    S("s_mov_b32 s%d, s%d", sPAIR, sJ)
    S("s_mov_b32 s%d, s%d", sSPLIT, sX)
    S("s_lshr_b32 s%d, s%d, 4", sBR, sPAIR)
    S("s_and_b32 s%d, s%d, 15", sBH, sPAIR)
    S("s_add_u32 s%d, s%d, s%d", sHH1, sJ, sX)
    S("s_and_b32 s%d, s%d, 7", sHH1, sHH1)
    S("s_mov_b32 s%d, s%d", sG3, sX)
    S("s_lshr_b32 s%d, s%d, 2", sHH3, sJ)
    S("s_and_b32 s%d, s%d, 3", sCB, sHH1)
    S("s_lshl_b32 s%d, s%d, 14", sLDS, sWAVE)
    S("s_add_u32 s%d, s%d, %d", sLDS, sLDS, L_RING)
    l16, lhi = vT[0], vT[1]
    S("v_and_b32 v%d, 15, v%d", l16, vLANE)
    S("v_lshrrev_b32 v%d, 4, v%d", lhi, vLANE)
    for t in range(2):
        S("v_add_u32 v%d, %d, v%d", vT[2], 4 * t, lhi)
        S("v_lshlrev_b32 v%d, 1, v%d", vT[2], vT[2])
        S("v_xor_b32 v%d, v%d, v%d", vT[2], vT[2], l16)
        S("v_lshlrev_b32 v%d, 4, v%d", vT[2], vT[2])
        S("v_lshl_add_u32 v%d, v%d, 13, v%d", vWQoff[t], lhi, vT[2])
        S("v_lshl_add_u32 v%d, v%d, 8, v%d", vVoff[t], lhi, vT[2])
    S("v_and_b32 v%d, 3, v%d", vT[2], vLANE)
    S("v_lshlrev_b32 v%d, 11, v%d", vT[2], vT[2])
    S("v_lshl_add_u32 v%d, v%d, 3, v%d", vA0, lhi, vT[2])
    S("s_lshr_b32 s%d, s%d, 3", sT0, sJ)
    S("s_lshl_b32 s%d, s%d, 9", sT1, sT0)
    S("s_lshl_b32 s%d, s%d, 7", sT2, sWAVE)
    S("s_add_u32 s%d, s%d, s%d", sT1, sT1, sT2)
    S("v_add_u32 v%d, s%d, v%d", vA0, sT1, vA0)
    S("s_lshl_b32 s%d, s%d, 12", sWQ, sT1)
    S("s_and_b32 s%d, s%d, 3", sT2, sX); S("s_lshl_b32 s%d, s%d, 11", sT2, sT2); S("s_add_u32 s%d, s%d, s%d", sWQ, sWQ, sT2)
    S("s_lshl_b32 s%d, s%d, 8", sT2, sHH1); S("s_add_u32 s%d, s%d, s%d", sWQ, sWQ, sT2)
    S("s_lshl_b32 s%d, s%d, 3", sQPo, sX); S("s_add_u32 s%d, s%d, s%d", sQPo, sQPo, sHH1)
    S("s_lshl_b32 s%d, s%d, 2", sQPo, sQPo); S("s_add_u32 s%d, s%d, s%d", sQPo, sQPo, sT0)
    S("s_lshl_b32 s%d, s%d, 10", sQPo, sQPo); S("s_add_u32 s%d, s%d, %d", sQPo, sQPo, WS_QP)
    S("s_lshl_b32 s%d, s%d, 14", sT2, sPAIR); S("s_lshl_b32 s%d, s%d, 8", sT3, sSPLIT)
    S("s_add_u32 s%d, s%d, s%d", sT2, sT2, sT3); S("s_add_u32 s%d, s%d, %d", sT2, sT2, WS_OP)
    S("v_lshrrev_b32 v%d, 5, v0", vT[2]); S("v_and_b32 v%d, 31, v0", vT[3])
    S("v_lshlrev_b32 v%d, 11, v%d", vT[4], vT[2]); S("v_lshl_add_u32 v%d, v%d, 3, v%d", vT[4], vT[3], vT[4])
    S("v_add_u32 v%d, s%d, v%d", cOPst, sT2, vT[4])
    S("v_mul_u32_u24 v%d, %d, v%d", cOBr, OBS, vT[2]); S("v_lshl_add_u32 v%d, v%d, 4, v%d", cOBr, vT[3], cOBr)
    S("s_lshl_b32 s%d, s%d, 3", sT1, sG3); S("s_add_u32 s%d, s%d, s%d", sT1, sT1, sHH3)
    S("s_lshl_b32 s%d, s%d, 2", sT1, sT1); S("s_add_u32 s%d, s%d, s%d", sT1, sT1, sCB)
    S("s_lshl_b32 s%d, s%d, 12", sT1, sT1); S("s_add_u32 s%d, s%d, %d", sT1, sT1, WS_OUTP)
    S("v_lshlrev_b32 v%d, 4, v0", vA2); S("v_add_u32 v%d, s%d, v%d", vA2, sT1, vA2)
    for i in range(4): S("v_mov_b32 v%d, -1", vMARK + i)
    e("s_mov_b32 s50, 8388608"); e("s_mov_b32 s51, 0x20000")
    S("s_cmp_lt_u32 s%d, 4", sX)
    e("s_waitcnt lgkmcnt(0)")
    e("s_cselect_b32 s48, s10, s20"); e("s_cselect_b32 s49, s11, s21")

    def issue_kv(kind, soff, imm, buf, tag):
        S("s_add_u32 m0, s%d, %d", sLDS, buf * 4096)
        S("s_add_u32 s%d, s%d, %d", sOFF, soff, imm)
        for t in range(4):
            if kind == "k":
                a.vmem("buffer_load_dwordx4 v%d, s[40:43], s%d offen offset:%d%s lds" % (vKoff[t], sOFF, t * 1024, ntf), tag)
            else:
                a.vmem("buffer_load_dwordx4 v%d, s[44:47], s%d offen offset:%d%s lds" % (vVoff[t & 1], sOFF, t * 1024, ntf), tag)
    def issue_wq(i, buf, tag):
        for t in range(4):
            S("s_add_u32 m0, s%d, %d", sLDS, buf * 4096 + t * 1024)
            S("s_add_u32 s%d, s%d, %d", sOFF, sWQ, (i * 16 + t * 4) * 8192)
            a.vmem("buffer_load_dwordx4 v%d, s[48:51], s%d offen%s lds" % (vWQoff[t & 1], sOFF, ntf), tag)
    def issue_wo(i, tag):
        for t in range(4):
            S("s_add_u32 m0, s%d, %d", sLDS, i * 4096 + t * 1024)
            S("s_add_u32 s%d, s%d, %d", sOFF, sWO, (i * 8 + t * 2) * 2048)
            a.vmem("buffer_load_dwordx4 v%d, s[52:55], s%d offen%s lds" % (vWOoff[t], sOFF, ntf), tag)

    chunks = [("wq", i) for i in range(4)] + [("k", i) for i in range(NCH)] + [("v", i) for i in range(NCH)]
    nstat = len(chunks)
    chunks += [("k", NCH), ("v", NCH), ("k", NCH + 1), ("v", NCH + 1)]
    assert nstat % 4 == 0
    def issue(n):
        kind, i = chunks[n]
        if kind == "wq": issue_wq(i, n % 4, n)
        else: issue_kv(kind, sKV, i * 4096, n % 4, n)
    e("s_cselect_b32 s52, s12, s22"); e("s_cselect_b32 s53, s13, s23")
    issue(0)
    S("s_cmp_gt_u32 s%d, 0", sWAVE)
    e("s_cbranch_scc1 L_clr1")
    S("v_lshlrev_b32 v%d, 4, v%d", vA1, vLANE); S("v_add_u32 v%d, s%d, v%d", vA1, sQPo, vA1)
    S("global_store_dwordx4 v%d, %s, %s sc1", vA1, vr(vMARK, 4), WS)
    e("s_branch L_clrdone")
    a.label("L_clr1")
    S("s_cmp_gt_u32 s%d, 1", sWAVE)
    e("s_cbranch_scc1 L_clr2")
    S("s_lshl_b32 s%d, s%d, 8", sT2, sPAIR); S("s_lshl_b32 s%d, s%d, 2", sT3, sSPLIT)
    S("s_add_u32 s%d, s%d, s%d", sT2, sT2, sT3); S("s_add_u32 s%d, s%d, %d", sT2, sT2, WS_ML)
    S("v_lshlrev_b32 v%d, 5, v%d", vA1, vLANE); S("v_add_u32 v%d, s%d, v%d", vA1, sT2, vA1)
    e("s_mov_b64 exec, 0xff")
    S("global_store_dword v%d, v%d, %s sc1", vA1, vMARK, WS)
    e("s_branch L_clrdone")
    a.label("L_clr2")
    S("s_add_u32 s%d, s%d, s%d", sT2, sWAVE, sSPLIT)
    S("s_cmp_lg_u32 s%d, 2", sT2)
    e("s_cbranch_scc1 L_clrdone")
    S("s_lshl_b32 s%d, s%d, 8", sT2, sPAIR)
    S("v_mov_b32 v%d, s%d", vA3, sT2)
    e("s_mov_b64 exec, 1")
    S("global_store_dword v%d, v%d, %s sc1", vA3, vZERO, WS)
    a.label("L_clrdone")
    e("s_mov_b64 exec, -1")
    a.vmem("global_store_dwordx2 v%d, %s, %s sc1" % (cOPst, vr(vMARK, 2), WS), "clr")
    a.vmem("global_store_dwordx4 v%d, %s, %s sc1" % (vA2, vr(vMARK, 4), WS), "clr")
    for i in range(4):
        a.vmem("global_load_dwordx2 %s, v%d, s[4:5] offset:%d" % (vr(vX + 2 * i, 2), vA0, 32 * i), "x")
    e("s_barrier")
    for n in range(1, 4): issue(n)
    stamp(early=True)
    S("s_mov_b32 s%d, 0x%08x", sC, f2u(CEXP))
    S("s_mov_b32 s%d, 0xffff0000", sHI)
    e("s_mov_b32 s54, 8388608"); e("s_mov_b32 s55, 0x20000")
    S("s_cmp_eq_u32 s%d, 0", sBR)
    e("s_cselect_b32 s40, s6, s16"); e("s_cselect_b32 s41, s7, s17")
    e("s_cselect_b32 s44, s8, s18"); e("s_cselect_b32 s45, s9, s19")
    e("s_mov_b32 s42, 33554432"); e("s_mov_b32 s43, 0x20000")
    e("s_mov_b32 s46, 33554432"); e("s_mov_b32 s47, 0x20000")
    S("s_lshl_b32 s%d, s%d, 21", sPOOL, sBH)
    S("s_lshl_b32 s%d, s%d, 2", sT2, sSPLIT); S("s_add_u32 s%d, s%d, s%d", sT2, sT2, sWAVE)
    S("s_mul_i32 s%d, s%d, %d", sKV, sT2, stat_keys * 256); S("s_add_u32 s%d, s%d, s%d", sKV, sKV, sPOOL)
    S("s_add_u32 s%d, s%d, %d", sPOOL, sPOOL, pool_base)
    S("s_lshl_b32 s%d, s%d, 10", sT3, sWAVE); S("s_add_u32 s%d, s%d, s%d", sT1, sT1, sT3)
    S("v_lshlrev_b32 v%d, 6, v%d", cOUT, l16)
    S("v_lshl_add_u32 v%d, v%d, 4, v%d", cOUT, lhi, cOUT)
    S("v_add_u32 v%d, s%d, v%d", cOUT, sT1, cOUT)
    for t in range(4):
        S("v_add_u32 v%d, %d, v%d", vT[2], 4 * t, lhi)
        S("v_xor_b32 v%d, v%d, v%d", vT[2], vT[2], l16)
        S("v_lshlrev_b32 v%d, 4, v%d", vT[2], vT[2])
        S("v_lshl_add_u32 v%d, v%d, 8, v%d", vKoff[t], lhi, vT[2])
    S("v_lshrrev_b32 v%d, 2, v%d", vT[2], vLANE)
    S("v_and_b32 v%d, 7, v%d", vT[3], vT[2])
    S("v_and_b32 v%d, 3, v%d", vT[4], vLANE)
    S("v_lshlrev_b32 v%d, 3, v%d", vT[4], vT[4])
    S("v_lshl_add_u32 v%d, v%d, 8, v%d", vT[4], vT[2], vT[4])
    S("v_add_u32 v%d, s%d, v%d", vT[4], sLDS, vT[4])
    for dt in range(8):
        S("v_xor_b32 v%d, %d, v%d", vT[5], dt, vT[3])
        S("v_lshl_add_u32 v%d, v%d, 5, v%d", vVrd[dt], vT[5], vT[4])
    for jj in range(4):
        S("v_add_u32 v%d, %d, v%d", vT[2], 4 * jj, lhi)
        S("v_xor_b32 v%d, v%d, v%d", vT[2], vT[2], l16)
        S("v_lshlrev_b32 v%d, 4, v%d", vT[2], vT[2])
        S("v_lshl_add_u32 v%d, v%d, 8, v%d", vT[2], l16, vT[2])
        S("v_add_u32 v%d, s%d, v%d", vKrd[jj], sLDS, vT[2])
    S("v_cmp_gt_u32 s[%d:%d], 8, v%d", sMK8, sMK8 + 1, l16)
    S("v_cmp_gt_u32 s[%d:%d], 4, v%d", sMK4, sMK4 + 1, l16)
    S("v_mul_u32_u24 v%d, %d, v%d", vA1, OBS, l16)
    S("v_lshl_add_u32 v%d, v%d, 4, v%d", vA1, lhi, vA1)
    S("s_mul_i32 s%d, s%d, %d", sT2, sWAVE, 8 * OBS)
    S("v_add_u32 v%d, s%d, v%d", cOBw, sT2, vA1)
    S("s_mul_i32 s%d, s%d, %d", sT2, sWAVE, 4 * OBS)
    S("v_add_u32 v%d, s%d, v%d", vA1, sT2, vA1)

    def tr_reads(dst_fn, buf):
        for dt in range(8):
            S("ds_read_b64_tr_b16 %s, v%d offset:%d", dst_fn(dt), vVrd[dt], buf * 4096)

    e("s_mov_b64 exec, 1")
    a.wait_vm("clr")
    S("ds_add_rtn_u32 v%d, v%d, v%d offset:%d", vT[2], vZERO, vONE, L_CNT + 8)
    e("s_waitcnt lgkmcnt(0)")
    S("v_readfirstlane_b32 s%d, v%d", sT2, vT[2])
    S("s_cmp_lg_u32 s%d, 3", sT2)
    e("s_cbranch_scc1 L_noflag")
    S("global_atomic_add v%d, v%d, %s sc1", vZERO, vONE, DBG)
    a.label("L_noflag")
    e("s_mov_b64 exec, -1")

    for n in range(4):
        a.wait_vm(n if n > 0 else "x")
        tr_reads(lambda dt: vr(vVF + 2 * dt, 2), n)
        e("s_waitcnt lgkmcnt(0)")
        issue(n + 4)
        for dt in range(8):
            c = "0" if n == 0 else vr(vO + 4 * dt, 4)
            S("v_mfma_f32_16x16x16_bf16 %s, %s, %s, %s", vr(vO + 4 * dt, 4), vr(vVF + 2 * dt, 2), vr(vX + 2 * n, 2), c)
    stamp(early=True)
    nop(8)
    S("s_mov_b64 exec, s[%d:%d]", sMK4, sMK4 + 1)
    for dt in range(8):
        S("ds_write_b128 v%d, %s offset:%d", vA1, vr(vO + 4 * dt, 4), L_QL + dt * 64)
    e("s_mov_b64 exec, 1")
    e("s_waitcnt lgkmcnt(0)")
    S("ds_add_rtn_u32 v%d, v%d, v%d offset:%d", vT[2], vZERO, vONE, L_CNT)
    e("s_mov_b64 exec, -1")
    e("s_waitcnt lgkmcnt(0)")
    S("v_readfirstlane_b32 s%d, v%d", sT2, vT[2])
    S("s_cmp_lg_u32 s%d, 3", sT2)
    e("s_cbranch_scc1 L_noqpub")
    S("v_mul_u32_u24 v%d, %d, v%d", vA1, OBS, lhi); S("v_lshl_add_u32 v%d, v%d, 5, v%d", vA1, l16, vA1)
    S("v_lshlrev_b32 v%d, 4, v%d", vA2, vLANE); S("v_add_u32 v%d, s%d, v%d", vA2, sQPo, vA2)
    for w in range(4):
        for p in range(2):
            S("ds_read_b128 %s, v%d offset:%d", vr(vO + 8 * w + 4 * p, 4), vA1, L_QL + w * 4 * OBS + p * 16)
    e("s_waitcnt lgkmcnt(0)")
    for i in range(8):
        S("v_add_f32 v%d, v%d, v%d", vO + i, vO + i, vO + 8 + i)
        S("v_add_f32 v%d, v%d, v%d", vO + 16 + i, vO + 16 + i, vO + 24 + i)
    for i in range(8):
        S("v_add_f32 v%d, v%d, v%d", vO + i, vO + i, vO + 16 + i)
    for i in range(4):
        S("v_cvt_pk_bf16_f32 v%d, v%d, v%d", vO + 8 + i, vO + 2 * i, vO + 2 * i + 1)
    for i in range(4):
        S("v_min_u32 v%d, -2, v%d", vO + 8 + i, vO + 8 + i)
    S("global_store_dwordx4 v%d, %s, %s sc1", vA2, vr(vO + 8, 4), WS)
    a.label("L_noqpub")

    def allreduce_rows(v, t, op):
        S("v_mov_b32 v%d, v%d", t, v); nop(2)
        S("v_permlane32_swap_b32 v%d, v%d", v, t); nop(1)
        S("%s v%d, v%d, v%d", op, v, v, t)
        S("v_mov_b32 v%d, v%d", t, v); nop(2)
        S("v_permlane16_swap_b32 v%d, v%d", v, t); nop(1)
        S("%s v%d, v%d, v%d", op, v, v, t)

    def tail_consts_a():
        S("v_lshrrev_b32 v%d, 5, v%d", vT[2], vLANE)
        S("v_bfe_u32 v%d, v%d, 1, 4", vT[3], vLANE)
        S("v_and_b32 v%d, 1, v%d", vT[4], vLANE)
        S("v_lshlrev_b32 v%d, 4, v%d", vT[4], vT[4])
        S("v_lshl_add_u32 v%d, v%d, 11, v%d", vT[4], vT[2], vT[4])
        for t in range(4):
            S("v_add_u32 v%d, %d, v%d", vT[5], 2 * t, vT[2])
            S("v_xor_b32 v%d, v%d, v%d", vT[5], vT[5], vT[3])
            S("v_lshl_add_u32 v%d, v%d, 5, v%d", vWOoff[t], vT[5], vT[4])
        S("s_and_b32 s%d, s%d, 3", sWO, sG3); S("s_lshl_b32 s%d, s%d, 3", sWO, sWO); S("s_add_u32 s%d, s%d, s%d", sWO, sWO, sHH3)
        S("s_lshl_b32 s%d, s%d, 18", sWO, sWO)
        S("s_lshl_b32 s%d, s%d, 16", sT2, sWAVE); S("s_add_u32 s%d, s%d, s%d", sWO, sWO, sT2)
        S("s_lshl_b32 s%d, s%d, 9", sT2, sCB); S("s_add_u32 s%d, s%d, s%d", sWO, sWO, sT2)
        S("s_lshl_b32 s%d, s%d, 8", sT2, sPAIR)
        S("s_add_u32 s%d, s30, s%d", sCNT, sT2); S("s_addc_u32 s%d, s31, 0", sCNT + 1)
        S("s_lshl_b32 s%d, s%d, 3", sT2, sWAVE)
        S("v_lshlrev_b32 v%d, 5, v%d", cMLw, vLANE); S("v_add_u32 v%d, s%d, v%d", cMLw, sT2, cMLw)
        S("v_and_b32 v%d, 0xe0, v0", cMLr)
        S("s_lshl_b32 s%d, s%d, 8", sT2, sPAIR); S("s_lshl_b32 s%d, s%d, 2", sT3, sSPLIT)
        S("s_add_u32 s%d, s%d, s%d", sT2, sT2, sT3); S("s_add_u32 s%d, s%d, %d", sT2, sT2, WS_ML)
        S("v_add_u32 v%d, s%d, v%d", cMLst, sT2, cMLr)
        S("v_lshlrev_b32 v%d, 2, v0", cT4)
    def tail_consts_b():
        S("s_lshr_b32 s%d, s%d, 2", sT2, sG3); S("s_lshl_b32 s%d, s%d, 4", sT2, sT2)
        S("s_and_b32 s%d, s%d, 3", sT3, sG3); S("s_add_u32 s%d, s%d, s%d", sT2, sT2, sT3)
        S("s_lshl_b32 s%d, s%d, 2", sT3, sWAVE); S("s_add_u32 s%d, s%d, s%d", sT2, sT2, sT3)
        S("s_lshl_b32 s%d, s%d, 3", sT2, sT2); S("s_add_u32 s%d, s%d, s%d", sT2, sT2, sHH3)
        S("s_lshl_b32 s%d, s%d, 11", sT3, sT2); S("s_add_u32 s%d, s%d, %d", sT3, sT3, WS_OP)
        S("v_lshlrev_b32 v%d, 2, v%d", vT[2], vLANE); S("v_add_u32 v%d, s%d, v%d", cG3, sT3, vT[2])
        S("s_lshl_b32 s%d, s%d, 5", sT3, sT2); S("s_add_u32 s%d, s%d, %d", sT3, sT3, WS_ML)
        S("v_mov_b32 v%d, s%d", cML3, sT3)
        S("v_lshrrev_b32 v%d, 2, v%d", vT[2], vLANE)
        S("v_and_b32 v%d, 7, v%d", vT[3], vT[2])
        S("v_and_b32 v%d, 3, v%d", vT[4], vLANE); S("v_lshlrev_b32 v%d, 3, v%d", vT[4], vT[4])
        S("v_lshl_add_u32 v%d, v%d, 9, v%d", vT[4], vT[2], vT[4])
        S("v_add_u32 v%d, %d, v%d", vT[4], L_RING, vT[4])
        S("s_lshl_b32 s%d, s%d, 2", sT2, sWAVE)
        for ct in range(4):
            S("s_add_u32 s%d, s%d, %d", sT3, sT2, ct)
            S("v_xor_b32 v%d, s%d, v%d", vT[5], sT3, vT[3])
            S("v_lshl_add_u32 v%d, v%d, 5, v%d", cWr[ct], vT[5], vT[4])
        S("v_and_b32 v%d, 3, v%d", cOfr, vLANE); S("v_lshlrev_b32 v%d, 8, v%d", cOfr, cOfr)
        S("v_lshl_add_u32 v%d, v%d, 3, v%d", cOfr, lhi, cOfr)
        S("s_lshl_b32 s%d, s2, 6", sT2); S("s_add_u32 s%d, s%d, %d", sT2, sT2, WS_OUTP)
        S("v_lshrrev_b32 v%d, 2, v%d", vT[2], vLANE); S("v_lshlrev_b32 v%d, 14, v%d", vT[2], vT[2])
        S("v_and_b32 v%d, 3, v%d", vT[3], vLANE); S("v_lshl_add_u32 v%d, v%d, 4, v%d", vT[2], vT[3], vT[2])
        S("v_add_u32 v%d, s%d, v%d", cF[0], sT2, vT[2])
        for i in range(1, 4):
            S("v_add_u32 v%d, %d, v%d", cF[i], i * 16 * 16384, cF[0])
        S("s_and_b32 s%d, s2, 3", sT2); S("s_lshl_b32 s%d, s%d, 11", sT2, sT2)
        S("s_lshr_b32 s%d, s2, 2", sT3); S("s_lshl_b32 s%d, s%d, 5", sT3, sT3); S("s_add_u32 s%d, s%d, s%d", sT2, sT2, sT3)
        S("v_lshlrev_b32 v%d, 3, v%d", vT[3], vT[3]); S("v_add_u32 v%d, s%d, v%d", cFo, sT2, vT[3])

    def gate_loads():
        S("s_and_b32 s%d, s2, 3", sT2); S("s_lshl_b32 s%d, s%d, 11", sT2, sT2)
        S("v_lshlrev_b32 v%d, 5, v%d", vA1, vLANE)
        S("v_add_u32 v%d, s%d, v%d", vA2, sT2, vA1)
        S("s_cmp_eq_u32 s%d, 0", sWAVE)
        e("s_cselect_b64 exec, -1, 1")
        a.vmem("global_load_dwordx4 %s, v%d, s[4:5]" % (vr(vGT, 4), vA2), "gate")
        a.vmem("global_load_dwordx4 %s, v%d, s[4:5] offset:16" % (vr(vGT + 4, 4), vA2), "gate")
        a.vmem("global_load_dwordx4 %s, v%d, s[24:25]" % (vr(vGT + 8, 4), vA1), "gate")
        a.vmem("global_load_dwordx4 %s, v%d, s[24:25] offset:16" % (vr(vGT + 12, 4), vA1), "gate")
        e("s_mov_b64 exec, -1")
    def gate_compute():
        assert "gate" not in a.vm
        S("v_mov_b32 v%d, 0", vGATE)
        for i in range(8):
            S("v_lshlrev_b32 v%d, 16, v%d", vT[2], vGT + i)
            S("v_lshlrev_b32 v%d, 16, v%d", vT[3], vGT + 8 + i)
            S("v_fmac_f32 v%d, v%d, v%d", vGATE, vT[2], vT[3])
            S("v_and_b32 v%d, s%d, v%d", vT[2], sHI, vGT + i)
            S("v_and_b32 v%d, s%d, v%d", vT[3], sHI, vGT + 8 + i)
            S("v_fmac_f32 v%d, v%d, v%d", vGATE, vT[2], vT[3])
        for r in (8, 4, 2, 1):
            nop(2)
            S("v_mov_b32_dpp v%d, v%d row_ror:%d row_mask:0xf bank_mask:0xf", vT[2], vGATE, r)
            S("v_add_f32 v%d, v%d, v%d", vGATE, vGATE, vT[2])
        allreduce_rows(vGATE, vT[2], "v_add_f32")
        S("v_mul_f32 v%d, 0x%08x, v%d", vGATE, f2u(-1.4426950408889634), vGATE)
        S("v_exp_f32 v%d, v%d", vGATE, vGATE); nop(1)
        S("v_add_f32 v%d, 1.0, v%d", vGATE, vGATE)
        S("v_rcp_f32 v%d, v%d", vGATE, vGATE)

    def maxN(dst, base, n):
        assert n % 2 == 0
        S("v_max3_u32 v%d, v%d, v%d, v%d", dst, base, base + 1, base + 2)
        for i in range(3, n - 1, 2):
            S("v_max3_u32 v%d, v%d, v%d, v%d", dst, dst, base + i, base + i + 1)
        S("v_max_u32 v%d, v%d, v%d", dst, dst, base + n - 1)

    nS = 4 * NCH
    q_at = gather_at + 5
    p1_at, p2_at, p3_at = 2 * NCH - 3, 2 * NCH - 2, 2 * NCH - 1
    assert q_at <= p1_at
    def qg_loads(count):
        for ks in range(4):
            s = "global_load_dwordx2 %s, v%d, %s offset:%d sc1" % (vr(vG + 2 * ks, 2), vA1, WS, ks * 1024)
            if count: a.vmem(s, "qg")
            else: e(s)
    for n in range(4, nstat):
        kind, i = chunks[n]
        ci = n - 4
        a.wait_vm(n)
        if kind == "k":
            for jj in range(4):
                S("ds_read_b128 %s, v%d offset:%d", ar(parkK(i) + 4 * jj, 4), vKrd[jj], (n % 4) * 4096)
        else:
            tr_reads(lambda dt: parkV(i, dt, 2), n % 4)
        e("s_waitcnt lgkmcnt(0)")
        issue(n + 4)
        if ci == 0:
            tail_consts_a()
        if ci == 1:
            tail_consts_b()
            gate_loads()
        if ci == flag_at:
            a.vmem("global_load_dword v%d, v%d, %s sc1" % (vFL, vZERO, DBG), "flag")
        if ci == 6:
            S("s_cmp_lg_u32 s%d, 0", sWAVE)
            e("s_cbranch_scc1 L_nogate")
            gate_compute()
            a.label("L_nogate")
        if ci == gather_at:
            if "flag" in a.vm:
                a.wait_vm("flag")
            S("s_mov_b32 s%d, 0", sSPIN)
            a.label("L_flagchk")
            S("v_readfirstlane_b32 s%d, v%d", sT2, vFL)
            S("s_cmp_ge_u32 s%d, 256", sT2)
            e("s_cbranch_scc1 L_flagok")
            S("s_add_u32 s%d, s%d, 1", sSPIN, sSPIN)
            S("s_cmp_gt_u32 s%d, %d", sSPIN, SPIN_CAP)
            e("s_cbranch_scc1 L_flagok")
            S("global_load_dword v%d, v%d, %s sc1", vFL, vZERO, DBG)
            e("s_waitcnt vmcnt(0)")
            e("s_branch L_flagchk")
            a.label("L_flagok")
            S("s_and_b32 s%d, s%d, 3", sT2, sBH); S("s_lshl_b32 s%d, s%d, 2", sT3, sBR); S("s_add_u32 s%d, s%d, s%d", sT2, sT2, sT3)
            S("s_lshl_b32 s%d, s%d, 15", sT2, sT2)
            S("s_lshr_b32 s%d, s%d, 2", sT3, sBH); S("s_lshl_b32 s%d, s%d, 8", sT3, sT3); S("s_add_u32 s%d, s%d, s%d", sT2, sT2, sT3)
            S("s_add_u32 s%d, s%d, %d", sT2, sT2, WS_QP)
            S("v_lshrrev_b32 v%d, 5, v0", vA1); S("v_lshlrev_b32 v%d, 12, v%d", vA1, vA1)
            S("v_and_b32 v%d, 31, v0", vA2); S("v_lshl_add_u32 v%d, v%d, 3, v%d", vA1, vA2, vA1)
            S("v_add_u32 v%d, s%d, v%d", vA1, sT2, vA1)
            qg_loads(True)
        if ci == q_at:
            if "qg" in a.vm:
                a.wait_vm("qg")
            S("s_mov_b32 s%d, 0", sSPIN)
            a.label("L_qchk")
            maxN(vT[2], vG, 8)
            S("v_cmp_eq_u32 vcc, -1, v%d", vT[2])
            e("s_nop 4")
            e("s_cbranch_vccz L_qok")
            S("s_add_u32 s%d, s%d, 1", sSPIN, sSPIN)
            S("s_cmp_gt_u32 s%d, %d", sSPIN, SPIN_CAP)
            e("s_cbranch_scc1 L_qok")
            qg_loads(False)
            e("s_waitcnt vmcnt(0)")
            e("s_branch L_qchk")
            a.label("L_qok")
            acc = [vG + 8 + k for k in range(4)]
            for ks in range(4):
                for d in range(2):
                    src = vG + 2 * ks + d
                    if ks == 0:
                        S("v_lshlrev_b32 v%d, 16, v%d", acc[2 * d], src)
                        S("v_and_b32 v%d, s%d, v%d", acc[2 * d + 1], sHI, src)
                    else:
                        S("v_lshlrev_b32 v%d, 16, v%d", vT[2], src)
                        S("v_and_b32 v%d, s%d, v%d", vT[3], sHI, src)
                        S("v_add_f32 v%d, v%d, v%d", acc[2 * d], acc[2 * d], vT[2])
                        S("v_add_f32 v%d, v%d, v%d", acc[2 * d + 1], acc[2 * d + 1], vT[3])
            S("v_cvt_pk_bf16_f32 v%d, v%d, v%d", vG, acc[0], acc[1])
            S("v_cvt_pk_bf16_f32 v%d, v%d, v%d", vG + 1, acc[2], acc[3])
            S("v_lshlrev_b32 v%d, 3, v0", vA1)
            S("ds_write_b64 v%d, %s offset:%d", vA1, vr(vG, 2), L_QB)
            e("s_mov_b64 exec, 1")
            e("s_waitcnt lgkmcnt(0)")
            S("ds_add_u32 v%d, v%d offset:%d", vZERO, vONE, L_CNT + 4)
            e("s_mov_b64 exec, -1")
            S("v_and_b32 v%d, 7, v%d", vA1, vLANE); S("v_lshlrev_b32 v%d, 8, v%d", vA1, vA1)
            S("v_lshl_add_u32 v%d, v%d, 4, v%d", vA1, lhi, vA1)
        if ci == p1_at:
            stamp(early=True)
            S("s_mov_b32 s%d, 0", sSPIN)
            a.label("L_qw")
            S("ds_read_b32 v%d, v%d offset:%d", vT[2], vZERO, L_CNT + 4)
            e("s_waitcnt lgkmcnt(0)")
            S("v_readfirstlane_b32 s%d, v%d", sT2, vT[2])
            S("s_add_u32 s%d, s%d, 1", sSPIN, sSPIN)
            S("s_cmp_gt_u32 s%d, %d", sSPIN, SPIN_CAP * 50)
            e("s_cbranch_scc1 L_qwok")
            S("s_cmp_lt_u32 s%d, 4", sT2)
            e("s_cbranch_scc1 L_qw")
            a.label("L_qwok")
            for jj in range(4):
                S("ds_read_b128 %s, v%d offset:%d", vr(vQ + 4 * jj, 4), vA1, L_QB + jj * 64)
            e("s_waitcnt lgkmcnt(0)")
            stamp(early=True)
            for jj in range(4):
                for k in range(NCH):
                    c = "0" if jj == 0 else vr(vS + 4 * k, 4)
                    S("v_mfma_f32_16x16x32_bf16 %s, %s, %s, %s", vr(vS + 4 * k, 4), ar(parkK(k) + 4 * jj, 4), vr(vQ + 4 * jj, 4), c)
        if ci == p2_at:
            S("v_max3_f32 v%d, v%d, v%d, v%d", vM, vS, vS + 1, vS + 2)
            k = 3
            while k + 1 < nS:
                S("v_max3_f32 v%d, v%d, v%d, v%d", vM, vM, vS + k, vS + k + 1); k += 2
            S("v_max_f32 v%d, v%d, v%d", vM, vM, vS + nS - 1)
            allreduce_rows(vM, vT[2], "v_max_f32")
            S("v_mul_f32 v%d, s%d, v%d", vMC, sC, vM)
            for k in range(nS):
                S("v_fma_f32 v%d, v%d, s%d, -v%d", vS + k, vS + k, sC, vMC)
            for k in range(nS):
                S("v_exp_f32 v%d, v%d", vS + k, vS + k)
            nop(1)
            S("v_add_f32 v%d, v%d, v%d", vL, vS, vS + 1)
            S("v_add_f32 v%d, v%d, v%d", vT[2], vS + 2, vS + 3)
            for k in range(4, nS, 2):
                S("v_add_f32 v%d, v%d, v%d", vL, vL, vS + k)
                S("v_add_f32 v%d, v%d, v%d", vT[2], vT[2], vS + k + 1)
            S("v_add_f32 v%d, v%d, v%d", vL, vL, vT[2])
            for k in range(2 * NCH):
                S("v_cvt_pk_bf16_f32 v%d, v%d, v%d", vP + k, vS + 2 * k, vS + 2 * k + 1)
        if ci == p3_at:
            S("s_mov_b32 s%d, 1", sCLAIM)
            S("s_atomic_add s%d, s[%d:%d], 0x0 glc", sCLAIM, sCNT, sCNT + 1)
            for u in range(NS):
                for dt in range(8):
                    c = "0" if u == 0 else vr(vO + 4 * dt, 4)
                    S("v_mfma_f32_16x16x32_bf16 %s, %s, %s, %s", vr(vO + 4 * dt, 4), parkV(2 * u, dt, 4), vr(vP + 4 * u, 4), c)
    stamp(early=True)
    S("s_mov_b32 s%d, 0", sST)
    a.label("L_loop")
    for h in range(2):
        e("s_waitcnt vmcnt(12) lgkmcnt(0)")
        for jj in range(4):
            S("ds_read_b128 %s, v%d offset:%d", vr(vKF + 4 * jj, 4), vKrd[jj], 2 * h * 4096)
        S("s_cmp_lg_u32 s%d, 0", sST)
        S("s_cbranch_scc1 L_st2_%d", h)
        S("s_cmp_ge_u32 s%d, %d", sCLAIM, pool_units)
        S("s_cbranch_scc1 L_st1_%d", h)
        S("s_lshl_b32 s%d, s%d, 12", sUNIT, sCLAIM); S("s_add_u32 s%d, s%d, s%d", sUNIT, sUNIT, sPOOL)
        e("s_waitcnt lgkmcnt(0)")
        issue_kv("k", sUNIT, 0, 2 * h, "x")
        S("s_branch L_ka_%d", h)
        a.label("L_st2_%d" % h)
        S("s_mov_b32 s%d, 1", sST)
        a.label("L_st1_%d" % h)
        S("s_add_u32 s%d, s%d, 1", sST, sST)
        e("s_waitcnt lgkmcnt(0)")
        issue_wo(2 * h, "x")
        a.label("L_ka_%d" % h)
        for jj in range(4):
            c = "0" if jj == 0 else vr(vS, 4)
            S("v_mfma_f32_16x16x32_bf16 %s, %s, %s, %s", vr(vS, 4), vr(vKF + 4 * jj, 4), vr(vQ + 4 * jj, 4), c)
        nop(8)
        S("v_max3_f32 v%d, v%d, v%d, v%d", vT[3], vS, vS + 1, vS + 2)
        S("v_max_f32 v%d, v%d, v%d", vT[3], vT[3], vS + 3)
        allreduce_rows(vT[3], vT[2], "v_max_f32")
        S("v_max_f32 v%d, v%d, v%d", vM, vM, vT[3])
        S("v_mul_f32 v%d, s%d, v%d", vT[3], sC, vM)
        S("v_sub_f32 v%d, v%d, v%d", vAL, vMC, vT[3])
        S("v_mov_b32 v%d, v%d", vMC, vT[3])
        S("v_exp_f32 v%d, v%d", vAL, vAL)
        for i in range(4):
            S("v_fma_f32 v%d, v%d, s%d, -v%d", vS + i, vS + i, sC, vMC)
        for i in range(4):
            S("v_exp_f32 v%d, v%d", vS + i, vS + i)
        for i in range(32):
            S("v_mul_f32 v%d, v%d, v%d", vO + i, vAL, vO + i)
        S("v_add_f32 v%d, v%d, v%d", vT[2], vS, vS + 1)
        S("v_add_f32 v%d, v%d, v%d", vT[3], vS + 2, vS + 3)
        S("v_add_f32 v%d, v%d, v%d", vT[2], vT[2], vT[3])
        S("v_fma_f32 v%d, v%d, v%d, v%d", vL, vL, vAL, vT[2])
        S("v_cvt_pk_bf16_f32 v%d, v%d, v%d", vP, vS, vS + 1)
        S("v_cvt_pk_bf16_f32 v%d, v%d, v%d", vP + 1, vS + 2, vS + 3)
        S("v_mov_b32 v%d, v%d", vKF + 1, vL)
        allreduce_rows(vKF + 1, vT[2], "v_add_f32")
        S("v_mov_b32 v%d, v%d", vKF, vMC)
        e("s_mov_b64 exec, 0xff")
        S("ds_write_b64 v%d, %s offset:%d", cMLw, vr(vKF, 2), L_MLB)
        e("s_mov_b64 exec, -1")
        e("s_waitcnt vmcnt(12)")
        tr_reads(lambda dt: vr(vVF + 2 * dt, 2), 2 * h + 1)
        e("s_waitcnt lgkmcnt(0)")
        for dt in range(8):
            S("v_mfma_f32_16x16x16_bf16 %s, %s, %s, %s", vr(vO + 4 * dt, 4), vr(vVF + 2 * dt, 2), vr(vP, 2), vr(vO + 4 * dt, 4))
        S("s_cmp_lg_u32 s%d, 0", sST)
        S("s_cbranch_scc1 L_vw_%d", h)
        issue_kv("v", sUNIT, 0, 2 * h + 1, "x")
        S("s_mov_b32 s%d, 1", sCLAIM)
        S("s_atomic_add s%d, s[%d:%d], 0x0 glc", sCLAIM, sCNT, sCNT + 1)
        S("s_branch L_va_%d", h)
        a.label("L_vw_%d" % h)
        S("s_cmp_eq_u32 s%d, 2", sST)
        S("s_cbranch_scc1 L_done_%d", h)
        issue_wo(2 * h + 1, "x")
        a.label("L_va_%d" % h)
    e("s_branch L_loop")
    for h in range(2):
        a.label("L_done_%d" % h)
        S("s_mov_b32 s%d, %d", sUNIT, 2 * h + 1)
        if h == 0: e("s_branch L_done")
    a.label("L_done")
    a.vm = []
    stamp()
    S("s_mov_b64 exec, s[%d:%d]", sMK8, sMK8 + 1)
    nop(1)
    for dt in range(8):
        S("ds_write_b128 v%d, %s offset:%d", cOBw, vr(vO + 4 * dt, 4), L_OB + dt * 64)
    e("s_mov_b64 exec, -1")
    S("s_lshl_b32 s%d, s%d, 12", sT2, sUNIT); S("s_add_u32 s%d, s%d, s%d", sLDS, sLDS, sT2)
    S("s_lshl_b32 s%d, s%d, 14", sT2, sUNIT); S("s_add_u32 s%d, s%d, s%d", sWO, sWO, sT2)
    e("s_waitcnt lgkmcnt(0)")
    e("s_barrier")
    stamp(tail=True)
    if stamps and tailst: e("s_waitcnt lgkmcnt(0)")
    S("ds_read_b128 %s, v%d offset:%d", vr(vS, 4), cMLr, L_MLB)
    S("ds_read_b128 %s, v%d offset:%d", vr(vS + 4, 4), cMLr, L_MLB + 16)
    for w in range(4):
        S("ds_read_b128 %s, v%d offset:%d", vr(vG + 4 * w, 4), cOBr, L_OB + w * 8 * OBS)
    e("s_waitcnt lgkmcnt(4)")
    S("v_max3_f32 v%d, v%d, v%d, v%d", vM, vS, vS + 2, vS + 4)
    S("v_max_f32 v%d, v%d, v%d", vM, vM, vS + 6)
    for w in range(4):
        S("v_sub_f32 v%d, v%d, v%d", vS + 2 * w, vS + 2 * w, vM)
    for w in range(4):
        S("v_exp_f32 v%d, v%d", vS + 2 * w, vS + 2 * w)
    nop(1)
    S("v_mul_f32 v%d, v%d, v%d", vL, vS, vS + 1)
    for w in range(1, 4):
        S("v_fmac_f32 v%d, v%d, v%d", vL, vS + 2 * w, vS + 2 * w + 1)
    S("v_rcp_f32 v%d, v%d", vAL, vL)
    S("v_log_f32 v%d, v%d", vL, vL)
    e("s_waitcnt lgkmcnt(0)")
    for i in range(4):
        S("v_mul_f32 v%d, v%d, v%d", vG + i, vS, vG + i)
    for w in range(1, 4):
        for i in range(4):
            S("v_fmac_f32 v%d, v%d, v%d", vG + i, vS + 2 * w, vG + 4 * w + i)
    for i in range(4):
        S("v_mul_f32 v%d, v%d, v%d", vG + i, vAL, vG + i)
    S("v_cvt_pk_bf16_f32 v%d, v%d, v%d", vG + 4, vG, vG + 1)
    S("v_cvt_pk_bf16_f32 v%d, v%d, v%d", vG + 5, vG + 2, vG + 3)
    S("v_add_f32 v%d, v%d, v%d", vM, vM, vL)
    S("v_min_u32 v%d, -2, v%d", vG + 4, vG + 4); S("v_min_u32 v%d, -2, v%d", vG + 5, vG + 5)
    S("v_min_u32 v%d, -2, v%d", vM, vM)
    S("global_store_dwordx2 v%d, %s, %s sc1", cOPst, vr(vG + 4, 2), WS)
    e("s_mov_b32 exec_lo, 1"); e("s_mov_b32 exec_hi, 1")
    S("global_store_dword v%d, v%d, %s sc1", cMLst, vM, WS)
    e("s_mov_b64 exec, -1")
    stamp()
    issue_wo(0, "x")
    b = vS
    def g3_rec(s): S("global_load_dword v%d, v%d, %s offset:%d sc1", b + s, cG3, WS, s * 256)
    def g3_lse():
        for i in range(2):
            S("global_load_dwordx4 %s, v%d, %s offset:%d sc1", vr(b + 8 + 4 * i, 4), cML3, WS, i * 16)
    S("s_waitcnt vmcnt(%d)", g3_first)
    for s in range(8): g3_rec(s)
    g3_lse()
    e("s_waitcnt vmcnt(10)")
    e("s_barrier")
    stamp(tail=True)
    for kk in range(4):
        for ct in range(4):
            for hh in range(2):
                S("ds_read_b64_tr_b16 %s, v%d offset:%d", ar((kk * 4 + ct) * 4 + 2 * hh, 2), cWr[ct], (kk * 32 + hh * 16) * 512)
    S("s_mov_b32 s%d, 0", sSPIN)
    vW = vO
    vU = vO + 8
    a.label("L_g3")
    e("s_waitcnt vmcnt(0)")
    maxN(vT[2], b, 16)
    S("v_cmp_eq_u32 vcc, -1, v%d", vT[2])
    S("v_max3_f32 v%d, v%d, v%d, v%d", vM, b + 8, b + 9, b + 10)
    S("v_max3_f32 v%d, v%d, v%d, v%d", vM, vM, b + 11, b + 12)
    S("v_max3_f32 v%d, v%d, v%d, v%d", vM, vM, b + 13, b + 14)
    S("v_max_f32 v%d, v%d, v%d", vM, vM, b + 15)
    S("s_add_u32 s%d, s%d, 1", sSPIN, sSPIN)
    e("s_cbranch_vccz L_g3ok")
    S("s_cmp_gt_u32 s%d, %d", sSPIN, SPIN_CAP)
    e("s_cbranch_scc1 L_g3ok")
    for s in range(8):
        S("v_cmp_eq_u32 s[%d:%d], -1, v%d", 4 + 2 * (s % 4), 5 + 2 * (s % 4), b + s)
        if s % 4 == 3:
            nop(1)
            for k in range(4):
                S("s_mov_b64 exec, s[%d:%d]", 4 + 2 * k, 5 + 2 * k)
                S("s_cbranch_execz L_g3s_%d", s - 3 + k)
                g3_rec(s - 3 + k)
                a.label("L_g3s_%d" % (s - 3 + k))
            e("s_mov_b64 exec, -1")
    g3_lse()
    e("s_branch L_g3")
    a.label("L_g3ok")
    stamp()
    if tailst: S("s_mov_b32 s%d, s%d", sUNIT, sSPIN)
    for s in range(8):
        S("v_sub_f32 v%d, v%d, v%d", vW + s, b + 8 + s, vM)
    for s in range(8):
        S("v_exp_f32 v%d, v%d", vW + s, vW + s)
    for s in range(8):
        S("v_lshlrev_b32 v%d, 16, v%d", vU + 2 * s, b + s)
        S("v_and_b32 v%d, s%d, v%d", vU + 2 * s + 1, sHI, b + s)
    S("v_add_f32 v%d, v%d, v%d", vL, vW, vW + 1)
    S("v_add_f32 v%d, v%d, v%d", vT[4], vW + 2, vW + 3)
    S("v_add_f32 v%d, v%d, v%d", vT[5], vW + 4, vW + 5)
    S("v_add_f32 v%d, v%d, v%d", vM, vW + 6, vW + 7)
    S("v_add_f32 v%d, v%d, v%d", vL, vL, vT[4])
    S("v_add_f32 v%d, v%d, v%d", vM, vM, vT[5])
    S("v_add_f32 v%d, v%d, v%d", vL, vL, vM)
    S("v_rcp_f32 v%d, v%d", vL, vL)
    S("v_mul_f32 v%d, v%d, v%d", vT[2], vW, vU)
    S("v_mul_f32 v%d, v%d, v%d", vT[3], vW, vU + 1)
    for s in range(1, 8):
        S("v_fmac_f32 v%d, v%d, v%d", vT[2], vW + s, vU + 2 * s)
        S("v_fmac_f32 v%d, v%d, v%d", vT[3], vW + s, vU + 2 * s + 1)
    S("v_mul_f32 v%d, v%d, v%d", vT[2], vT[2], vL)
    S("v_mul_f32 v%d, v%d, v%d", vT[3], vT[3], vL)
    S("v_cvt_pk_bf16_f32 v%d, v%d, v%d", vT[2], vT[2], vT[3])
    S("ds_write_b32 v%d, v%d offset:%d", cT4, vT[2], L_OL)
    e("s_waitcnt lgkmcnt(0)")
    e("s_barrier")
    for i in range(8):
        S("ds_read_b64 %s, v%d offset:%d", vr(vQ + 2 * i, 2), cOfr, L_OL + i * 32)
    vD = vKF
    for kk in range(4):
        S("s_waitcnt lgkmcnt(%d)", 6 - 2 * kk)
        for ct in range(4):
            c = "0" if kk == 0 else vr(vD + 4 * ct, 4)
            S("v_mfma_f32_16x16x32_bf16 %s, %s, %s, %s", vr(vD + 4 * ct, 4), ar((kk * 4 + ct) * 4, 4), vr(vQ + 4 * kk, 4), c)
    S("v_sub_f32 v%d, 1.0, v%d", vAL, vGATE)
    S("s_mov_b32 s%d, 0", sSPIN)
    nop(3)
    S("s_mov_b64 exec, s[%d:%d]", sMK4, sMK4 + 1)
    for ct in range(4):
        for i in range(4):
            S("v_min_u32 v%d, -2, v%d", vD + 4 * ct + i, vD + 4 * ct + i)
        S("global_store_dwordx4 v%d, %s, %s offset:%d sc1", cOUT, vr(vD + 4 * ct, 4), WS, ct * 256)
    e("s_mov_b64 exec, -1")
    stamp()
    S("s_cmp_lg_u32 s%d, 0", sWAVE)
    e("s_cbranch_scc1 L_fin")
    sets = [vG, vGT, vO, vO + 16][:NP4]
    vR = vVF
    def g4_loads(p):
        for i in range(4):
            S("global_load_dwordx4 %s, v%d, %s sc1", vr(sets[p] + 4 * i, 4), cF[i], WS)
    def g4_rest():
        for i in range(4):
            S("v_mul_f32 v%d, v%d, v%d", vR + i, vR + i, vGATE)
        for i in range(4):
            S("v_fmac_f32 v%d, v%d, v%d", vR + i, vR + 4 + i, vAL)
        for r in (8, 4):
            nop(1)
            for i in range(4):
                S("v_mov_b32_dpp v%d, v%d row_ror:%d row_mask:0xf bank_mask:0xf", vR + 4 + i, vR + i, r)
            for i in range(4):
                S("v_add_f32 v%d, v%d, v%d", vR + i, vR + i, vR + 4 + i)
        for sw in ("v_permlane32_swap_b32", "v_permlane16_swap_b32"):
            for i in range(4):
                S("v_mov_b32 v%d, v%d", vR + 4 + i, vR + i)
            nop(2)
            for i in range(4):
                S("%s v%d, v%d", sw, vR + i, vR + 4 + i)
            nop(1)
            for i in range(4):
                S("v_add_f32 v%d, v%d, v%d", vR + i, vR + i, vR + 4 + i)
        S("v_cvt_pk_bf16_f32 v%d, v%d, v%d", vR + 4, vR, vR + 1)
        S("v_cvt_pk_bf16_f32 v%d, v%d, v%d", vR + 5, vR + 2, vR + 3)
    b = vG
    if g4_wait: e("s_waitcnt vmcnt(0)")
    g4_loads(0)
    a.label("L_g4")
    e("s_waitcnt vmcnt(0)")
    for i in range(4):
        S("v_max3_u32 v%d, v%d, v%d, v%d", vT[2 + i], b + 4 * i, b + 4 * i + 1, b + 4 * i + 2)
    for i in range(4):
        S("v_max_u32 v%d, v%d, v%d", vT[2 + i], vT[2 + i], b + 4 * i + 3)
    for i in range(4):
        S("v_cmp_eq_u32 s[%d:%d], -1, v%d", 4 + 2 * i, 5 + 2 * i, vT[2 + i])
    for i in range(4):
        S("v_add_f32 v%d, v%d, v%d", vR + i, b + i, b + 4 + i)
        S("v_add_f32 v%d, v%d, v%d", vR + 4 + i, b + 8 + i, b + 12 + i)
    e("s_or_b64 s[12:13], s[4:5], s[6:7]"); e("s_or_b64 vcc, s[8:9], s[10:11]"); e("s_or_b64 vcc, vcc, s[12:13]")
    e("s_cbranch_scc0 L_g4d")
    S("s_add_u32 s%d, s%d, 1", sSPIN, sSPIN)
    S("s_cmp_gt_u32 s%d, %d", sSPIN, SPIN_CAP)
    e("s_cbranch_scc1 L_g4d")
    for i in range(4):
        S("s_mov_b64 exec, s[%d:%d]", 4 + 2 * i, 5 + 2 * i)
        S("s_cbranch_execz L_g4s_%d", i)
        S("global_load_dwordx4 %s, v%d, %s sc1", vr(b + 4 * i, 4), cF[i], WS)
        a.label("L_g4s_%d" % i)
    e("s_mov_b64 exec, -1")
    e("s_branch L_g4")
    a.label("L_g4d")
    g4_rest()
    a.label("L_g4ok")
    e("s_mov_b64 exec, 0xf")
    S("global_store_dwordx2 v%d, %s, s[26:27]", cFo, vr(vR + 4, 2))
    e("s_mov_b64 exec, -1")
    a.label("L_fin")
    stamp()
    if stamps:
        e("s_waitcnt vmcnt(0) lgkmcnt(0)")
        if tailst:
            for cnt in (sUNIT, sSPIN):
                r = 80 + 2 * len(stamp_regs); stamp_regs.append(r)
                S("s_mul_i32 s%d, s%d, 100", r, cnt); S("s_add_u32 s%d, s%d, s80", r, r); S("s_addc_u32 s%d, s81, 0", r + 1)
        NST = len(stamp_regs)
        if dbgst:
            e("s_mov_b64 exec, 1")
            for i, r in enumerate(stamp_regs):
                S("v_mov_b32 v%d, s%d", vG, r)
                S("global_atomic_umax v%d, v%d, %s offset:%d sc1", vZERO, vG, DBG, 4 + 4 * i)
                nop(2)
            S("s_not_b32 s%d, s80", sT2)
            S("v_mov_b32 v%d, s%d", vG, sT2)
            S("global_atomic_umax v%d, v%d, %s offset:60 sc1", vZERO, vG, DBG)
        else:
            S("s_lshl_b32 s%d, s2, 2", sT2); S("s_add_u32 s%d, s%d, s%d", sT2, sT2, sWAVE)
            S("s_mul_i32 s%d, s%d, %d", sT2, sT2, NST * 8)
            S("s_add_u32 s%d, s%d, 0x%x", sT2, sT2, WS_STAMP)
            S("v_mov_b32 v%d, s%d", vA1, sT2)
            e("s_mov_b64 exec, 1")
            for i, r in enumerate(stamp_regs):
                S("v_mov_b32 v%d, s%d", vG, r); S("v_mov_b32 v%d, s%d", vG + 1, r + 1)
                S("global_store_dwordx2 v%d, %s, %s offset:%d", vA1, vr(vG, 2), WS, i * 8)
                nop(2)
        print("stamps:", NST, file=sys.stderr)
    a.label("L_end")
    return wrap(a.text(), 256, 256, L_END, 512, accum=256)

if __name__ == "__main__":
    open("f4.s", "w").write(gen())
    open("f4_st.s", "w").write(gen(stamps=True))
    open("f4t_st.s", "w").write(gen(stamps=True, tailst=True))
    open("f4_dbg.s", "w").write(gen(stamps=True, dbgst=True))
    open("f4d_dbg.s", "w").write(gen(stamps=True, dbgst=True, gather_at=10, flag_at=5))
```
